```python
import torch

def _softmax(x, axis=-1):
    return torch.softmax(x, dim=axis)
def _gelu(x):
    return torch.nn.functional.gelu(x, approximate="tanh")
def _silu(x):
    return torch.nn.functional.silu(x)
def _sigmoid(x):
    return torch.sigmoid(x)
def _layernorm(x, axis=-1, eps=1e-5):
    m = x.mean(dim=axis, keepdim=True)
    v = x.var(dim=axis, keepdim=True, unbiased=False)
    return (x - m) / torch.sqrt(v + eps)
def _scatter_add(tgt, idx, src, axis=0):
    return tgt.clone().index_add_(axis, idx, src)
def _segment_sum(src, seg, n):
    out = torch.zeros((n,) + src.shape[1:], dtype=src.dtype)
    return out.index_add_(0, seg, src)
def _pad(x, pw):
    flat = tuple(v for pair in reversed(pw) for v in pair)
    return torch.nn.functional.pad(x, flat)

kernel_name = 'recurrent_scan__gqa_block_cached__glu_gated_geglu__decode'

def setup_inputs():

    _w = (lambda a: (lambda t: t.to(torch.bfloat16) if t.is_floating_point() else t)(torch.as_tensor(a)))
    def _A_setup():
        B, Sq, D = 1, 1, 512
        Hq, Hkv, Sk, Dh = 32, 8, 32768, 128
        assert Hq % Hkv == 0, (Hq, Hkv)
        return {
            "x": _w((lambda *s: torch.randn(*s, dtype=torch.bfloat16) * 0.4)(B, Sq, D)),
            "k_cache": _w((lambda *s: torch.randn(*s, dtype=torch.bfloat16) * 1.6)(B, Hkv, Sk, Dh)),
            "v_cache": _w((lambda *s: torch.randn(*s, dtype=torch.bfloat16) * 1.6)(B, Hkv, Sk, Dh)),
            "wq": _w((lambda *s: torch.randn(*s, dtype=torch.bfloat16) * 1.6)(D, Hq * Dh) * (D ** -0.5)),
            "wo": _w((lambda *s: torch.randn(*s, dtype=torch.bfloat16) * 1.6)(Hq * Dh, D) * ((Hq * Dh) ** -0.5)),
        }
    _A_in = _A_setup()

    def _B_setup():
        B, S, Dm, Df = 1, 1, 512, 1792
        return {
            "x": _w((lambda *s: torch.randn(*s, dtype=torch.bfloat16) * 0.4)(B, S, Dm)),
            "w_gate": _w((lambda *s: torch.randn(*s, dtype=torch.bfloat16) * 1.6)(Dm, Df) * (Dm ** -0.5)),
            "w_up": _w((lambda *s: torch.randn(*s, dtype=torch.bfloat16) * 1.6)(Dm, Df) * (Dm ** -0.5)),
            "w_down": _w((lambda *s: torch.randn(*s, dtype=torch.bfloat16) * 1.6)(Df, Dm) * (Df ** -0.5)),
        }
    _B_in = _B_setup()

    return {
        "A_x": _A_in["x"],
        "A_k_cache": _A_in["k_cache"],
        "A_v_cache": _A_in["v_cache"],
        "A_wq": _A_in["wq"],
        "A_wo": _A_in["wo"],
        "B_x": _B_in["x"],
        "B_w_gate": _B_in["w_gate"],
        "B_w_up": _B_in["w_up"],
        "B_w_down": _B_in["w_down"],
    }

def reference(A_x, A_k_cache, A_v_cache, A_wq, A_wo, B_x, B_w_gate, B_w_up, B_w_down):
    def _A_ref(x, k_cache, v_cache, wq, wo):
        B, Sq, D = x.shape
        Hq, Dh = 32, 128
        Hkv = k_cache.shape[1]
        rep = Hq // Hkv
        q = (lambda x, *d: x.permute(*d))((x @ wq).reshape(B, Sq, Hq, Dh), 0, 2, 1, 3)
        k = (lambda x, n, axis: torch.repeat_interleave(x, n, dim=axis))(k_cache, rep, axis=1)
        v = (lambda x, n, axis: torch.repeat_interleave(x, n, dim=axis))(v_cache, rep, axis=1)
        scores = torch.einsum("bhqd,bhkd->bhqk", q, k) * (Dh ** -0.5)
        p = _softmax(scores, axis=-1)
        o = torch.einsum("bhqk,bhkd->bhqd", p, v)
        return (lambda x, *d: x.permute(*d))(o, 0, 2, 1, 3).reshape(B, Sq, Hq * Dh) @ wo

    def _B_ref(x, w_gate, w_up, w_down):
        g = torch.einsum("bsd,df->bsf", x, w_gate)
        u = torch.einsum("bsd,df->bsf", x, w_up)
        h = _gelu(g) * u
        return torch.einsum("bsf,fd->bsd", h, w_down)

    x = A_x
    xn = _layernorm(x, axis=-1)
    s = _A_ref(xn, A_k_cache, A_v_cache, A_wq, A_wo)
    g = _silu(_B_ref(xn, B_w_gate, B_w_up, B_w_down))
    return x + s * g
```

```python
import re

TRANS = ("v_exp_f32", "v_log_f32", "v_rcp_f32", "v_rsq_f32", "v_sqrt_f32", "v_sin_f32", "v_cos_f32")

def _regs(tok):
    tok = tok.strip()
    neg = tok.startswith("-")
    if neg: tok = tok[1:]
    if tok.startswith("abs(") or tok.startswith("|"):
        tok = tok.strip("|").replace("abs(", "").rstrip(")")
    m = re.fullmatch(r"([vsa])(\d+)", tok)
    if m: return [(m.group(1), int(m.group(2)))]
    m = re.fullmatch(r"([vsa])\[(\d+):(\d+)\]", tok)
    if m: return [(m.group(1), i) for i in range(int(m.group(2)), int(m.group(3)) + 1)]
    if tok in ("vcc", "vcc_lo", "vcc_hi"): return [("vcc", 0)]
    if tok in ("exec", "exec_lo", "exec_hi"): return [("exec", 0)]
    if tok == "m0": return [("m0", 0)]
    return []

class Asm:
    def __init__(self):
        self.lines = []
        self.t = 0
        self.valu_w = {}
        self.trans_w = {}
        self.mfma_w = {}
        self.mfma_c = {}
        self.valu_sw = {}
        self.store_d = {}
        self.nops = 0
    def raw(self, s):
        self.lines.append(s)
    def comment(self, s):
        self.lines.append("    ; " + s)
    def label(self, name):
        self.lines.append(name + ":")
    def nop(self, n):
        while n > 0:
            k = min(n, 16)
            self.lines.append(f"    s_nop {k-1}")
            self.t += k; n -= k; self.nops += 1
    def fence(self):
        need = 0
        for r, t in self.valu_w.items(): need = max(need, t + 2 - self.t + 1)
        for r, t in self.valu_sw.items(): need = max(need, t + 5 - self.t + 1)
        for r, (t, p) in self.mfma_w.items(): need = max(need, t + {2: 5, 4: 8, 8: 12, 16: 20}[p] - self.t + 1)
        for r, t in self.store_d.items(): need = max(need, t + 2 - self.t + 1)
        if need > 0: self.nop(need)
    def __call__(self, s):
        for line in s.strip().split("\n"):
            line = line.split(";")[0].strip()
            if line: self.emit(line)
    def emit(self, line):
        parts = line.split(None, 1)
        op = parts[0]
        rest = parts[1] if len(parts) > 1 else ""
        ops = [o.strip() for o in re.split(r",(?![^\[]*\])", rest)] if rest else []
        mods = ""
        if ops:
            last = ops[-1].split(None, 1)
            ops[-1] = last[0]
            mods = last[1] if len(last) > 1 else ""
        is_dpp = ("quad_perm" in mods or "row_" in mods or "wave_" in mods or op.endswith("_dpp"))
        reads, writes = [], []
        kind = "other"
        if op.startswith("v_mfma"):
            kind = "mfma"; writes = _regs(ops[0]); ab = _regs(ops[1]) + _regs(ops[2]); c = _regs(ops[3]); reads = ab + c
        elif op.startswith("v_permlane") and "swap" in op:
            kind = "perm"; writes = _regs(ops[0]) + _regs(ops[1]); reads = list(writes)
        elif op.startswith("v_readlane") or op.startswith("v_readfirstlane"):
            kind = "rdlane"; writes = _regs(ops[0]); reads = sum((_regs(o) for o in ops[1:]), [])
        elif op.startswith("v_cmp"):
            kind = "valu"; writes = _regs(ops[0]); reads = sum((_regs(o) for o in ops[1:]), [])
        elif op.startswith("v_"):
            kind = "valu"; writes = _regs(ops[0]); reads = sum((_regs(o) for o in ops[1:]), [])
            if "_co_" in op: writes += _regs(ops[1])
            if op.startswith("v_fmac") or op.startswith("v_dot2c") or op.startswith("v_pk_fmac") or (is_dpp and ("bank_mask" in mods or "row_mask" in mods)):
                reads += _regs(ops[0])
        elif op.startswith("buffer_load") or op.startswith("global_load"):
            kind = "vmem"; writes = _regs(ops[0]); reads = sum((_regs(o) for o in ops[1:]), [])
        elif op.startswith("buffer_store") or op.startswith("global_store") or op.startswith("buffer_atomic") or op.startswith("global_atomic"):
            kind = "vmem"; reads = sum((_regs(o) for o in ops), [])
        elif op.startswith("ds_read") or op.startswith("ds_bpermute") or op.startswith("ds_swizzle") or op.startswith("ds_permute"):
            kind = "ds"; writes = _regs(ops[0]); reads = sum((_regs(o) for o in ops[1:]), [])
        elif op.startswith("ds_"):
            kind = "ds"; reads = sum((_regs(o) for o in ops), [])
        elif op.startswith("s_"):
            kind = "salu"
            reads = sum((_regs(o) for o in ops), [])
        need = 0
        def req(tprev, ws):
            nonlocal need
            need = max(need, ws - (self.t - tprev - 1))
        valu_like = kind in ("valu", "perm", "rdlane")
        for r in reads:
            if r[0] in ("v", "a"):
                if r in self.valu_w:
                    if kind == "mfma": req(self.valu_w[r], 2)
                    if kind == "perm": req(self.valu_w[r], 2)
                    if kind == "rdlane": req(self.valu_w[r], 1)
                    if kind == "valu" and is_dpp and r in _regs(ops[1]): req(self.valu_w[r], 2)
                if r in self.trans_w and valu_like and op not in TRANS: req(self.trans_w[r], 1)
                if r in self.trans_w and kind in ("mfma", "vmem", "ds"): req(self.trans_w[r], 2)
                if r in self.mfma_w:
                    t, p = self.mfma_w[r]
                    if kind == "mfma" and r in c and r not in ab and writes == c and self.mfma_w.get(c[0], (None, None))[0] == t:
                        req(t, 2 if p == 2 else 0)
                    elif kind == "mfma" and r in c and r not in ab:
                        req(t, {2: 4, 4: 6, 8: 10, 16: 18}[p])
                    else:
                        req(t, {2: 5, 4: 8, 8: 12, 16: 20}[p])
            else:
                if r in self.valu_sw:
                    if valu_like or kind == "mfma":
                        req(self.valu_sw[r], 4 if kind == "rdlane" else 2)
                    if kind == "vmem": req(self.valu_sw[r], 5)
                    if kind == "salu": req(self.valu_sw[r], 1)
        for r in writes:
            if r[0] in ("v", "a"):
                if r in self.mfma_w and kind != "mfma":
                    t, p = self.mfma_w[r]; req(t, {2: 5, 4: 8, 8: 12, 16: 20}[p])
                if r in self.mfma_w and kind == "mfma" and not (r in c):
                    t, p = self.mfma_w[r]; req(t, {2: 5, 4: 8, 8: 12, 16: 20}[p])
                if r in self.mfma_c and valu_like:
                    t, p = self.mfma_c[r]; req(t, {2: 1, 4: 3, 8: 7, 16: 15}[p])
                if r in self.store_d: req(self.store_d[r], 2)
        if need > 0: self.nop(need)
        self.lines.append("    " + line)
        t = self.t
        if kind == "mfma":
            p = 4
            if "32x32" in op: p = 8
            if "4x4x" in op: p = 2
            if op.endswith("x4_f32") and "16x16" in op: p = 8
            for r in writes:
                self.mfma_w[r] = (t, p); self.valu_w.pop(r, None); self.trans_w.pop(r, None)
            for r in c: self.mfma_c[r] = (t, p)
        elif valu_like:
            for r in writes:
                if r[0] in ("v", "a"):
                    self.valu_w[r] = t; self.mfma_w.pop(r, None)
                    if op in TRANS: self.trans_w[r] = t
                    else: self.trans_w.pop(r, None)
                else:
                    self.valu_sw[r] = t
        elif kind in ("vmem", "ds"):
            for r in writes:
                self.valu_w.pop(r, None); self.mfma_w.pop(r, None); self.trans_w.pop(r, None)
            if kind == "vmem" and "store" in op and ("x4" in op or "x3" in op):
                d = _regs(ops[0]) if op.startswith("buffer") else _regs(ops[1])
                for r in d: self.store_d[r] = t
        elif kind == "salu":
            if ops and not op.startswith("s_cmp") and not op.startswith("s_cbranch") and not op.startswith("s_waitcnt"):
                for r in _regs(ops[0]): self.valu_sw.pop(r, None)
        if op == "s_nop":
            self.t += int(ops[0], 0) + 1
        else:
            self.t += 1
    def text(self):
        return "\n".join(self.lines) + "\n"
```

```python
import sys
from asmlib import Asm
NAME = "recurrent_scan__gqa_block_cached__glu_gated_geglu__decode_kernel"

WS_EPOCH = 0
WS_Q = 0x1000
WS_ML = 0x8000
WS_IN1 = 0x100000
WS_IN2 = 0x200000
WS_STAMP = 0x8000000
WS_SIZE = 0x10000000
TAGSTEP = 0x9E3779B1
LOG2E = 0x3FB8AA3B
SCALE = 0x3DB504F3
OOB = 0x40000000

L_XN = 0
L_QP = 2048
L_FP = 4096
L_QB = 5120
L_H = 6144
L_FLAG = 6208
L_MX = 6272
L_LP = 6400
L_O = 6528
L_RED = 6592
L_OP = 8192
LDS_BYTES = 8192 + 16384

DPP = "row_mask:0xf bank_mask:0xf"

def gen(path, W0=8, W=8, stamps=False, ldsmin=0, kvflags="nt", wflags="nt", spin=400000, nstamp=12):
    a = Asm()
    R = a.raw
    header = open("recurrent_scan__gqa_block_cached__glu_gated_geglu__decode.s.ref").read().split("; Override")[0]
    R(header.rstrip())
    R(f"; @launch grid=(256,1,1) block=(512,1,1) lds={max(LDS_BYTES, ldsmin)}")
    R('.amdgcn_target "amdgcn-amd-amdhsa--gfx950"')
    R(".text"); R(f".globl {NAME}"); R(".p2align 8"); R(f".type {NAME},@function"); R(f"{NAME}:")

    issued = []
    def vm(line, name):
        a(line); issued.append(name)
    def wait_vm(name, extra=""):
        n = len(issued) - 1 - issued.index(name)
        a(f"s_waitcnt vmcnt({min(n, 63)}) {extra}")
    stamp_n = [0]
    def stamp():
        if stamps:
            i = stamp_n[0]; stamp_n[0] += 1
            a(f"s_memrealtime s[{72+2*i}:{73+2*i}]")
    def wave_sum(v, tmp, op="v_add_f32", rows=True, full=True, first=("quad_perm:[1,0,3,2]", "quad_perm:[2,3,0,1]", "row_ror:4", "row_ror:8")):
        for m in first:
            for r in v:
                a(f"{op} v{r}, v{r}, v{r} {m} {DPP}")
        if rows:
            for r, t in zip(v, tmp):
                a(f"v_mov_b32 v{t}, v{r}")
            for r, t in zip(v, tmp):
                a(f"v_permlane16_swap_b32 v{r}, v{t}")
            for r, t in zip(v, tmp):
                a(f"{op} v{r}, v{r}, v{t}")
        if full:
            for r, t in zip(v, tmp):
                a(f"v_mov_b32 v{t}, v{r}")
            for r, t in zip(v, tmp):
                a(f"v_permlane32_swap_b32 v{r}, v{t}")
            for r, t in zip(v, tmp):
                a(f"{op} v{r}, v{r}, v{t}")
    def bf16r(dst, src):
        a(f"v_cvt_pk_bf16_f32 v{dst}, v{src}, v{src}")
        a(f"v_and_b32 v{dst}, 0xffff0000, v{dst}")

    RING = 64
    def slot(i): return RING + 4 * i
    def ld_tile(kind, i, sl):
        srd = "s[12:15]" if kind == "k" else "s[16:19]"
        vo = "v2" if kind == "k" else "v3"
        r = slot(sl)
        vm(f"buffer_load_dwordx4 v[{r}:{r+3}], {vo}, {srd}, s{40 + i // 4} offen offset:{(i % 4) * 1024} {kvflags}", f"{kind}{i}")
    ring_seq = [("k", i, i) for i in range(32)] + [("v", i, 32 + i) for i in range(16)]

    a("s_cmp_ge_u32 s2, 256")
    a("s_cbranch_scc1 L_end")
    stamp()
    a("""
    s_load_dwordx16 s[36:51], s[0:1], 0
    s_load_dwordx8 s[52:59], s[0:1], 64
    v_lshrrev_b32 v4, 6, v0
    v_and_b32 v1, 63, v0
    v_readfirstlane_b32 s3, v4
    s_and_b32 s4, s2, 7
    s_lshr_b32 s5, s2, 3
    v_lshlrev_b32 v3, 4, v1
    v_bfe_u32 v4, v1, 2, 2
    v_lshlrev_b32 v2, 8, v4
    v_lshrrev_b32 v4, 4, v1
    v_lshl_add_u32 v2, v4, 6, v2
    v_and_b32 v5, 3, v1
    v_lshl_add_u32 v2, v5, 4, v2
    """)
    a("""
    v_lshrrev_b32 v56, 1, v0
    v_lshlrev_b32 v57, 13, v56
    v_and_b32 v58, 1, v0
    v_lshl_add_u32 v57, v58, 4, v57
    v_add_u32 v58, 0x200000, v57
    s_lshl_b32 s68, s4, 10
    s_lshl_b32 s69, s5, 5
    s_add_u32 s68, s68, s69
    """)
    a("""
    v_and_b32 v59, 255, v0
    v_mul_u32_u24 v60, 3584, v59
    v_add_u32 v61, 0xe0000, v60
    s_mul_i32 s69, s4, 28
    s_add_u32 s69, s69, s5
    s_lshl_b32 s70, s69, 13
    s_lshl_b32 s69, s69, 4
    s_cmp_lt_u32 s5, 28
    """)
    a(f"s_cselect_b32 s69, s69, {OOB}")
    a(f"s_cselect_b32 s70, s70, {OOB}")
    a("s_cmp_ge_u32 s3, 4")
    a(f"s_cselect_b32 s70, s70, {OOB}")
    a("v_lshlrev_b32 v62, 2, v59")
    a("s_waitcnt lgkmcnt(0)")
    def srd(d, b, size):
        a(f"s_mov_b32 s{d}, s{b}"); a(f"s_and_b32 s{d+1}, s{b+1}, 0xffff"); a(f"s_mov_b32 s{d+2}, {size}"); a(f"s_mov_b32 s{d+3}, 0x20000")
    srd(8, 36, 1024)
    vm("buffer_load_dwordx4 v[52:55], v3, s[8:11], 0 offen", "x")
    srd(20, 42, 4 << 20)
    vm(f"buffer_load_dwordx4 v[20:23], v57, s[20:23], s68 offen {wflags}", "wq0")
    vm(f"buffer_load_dwordx4 v[24:27], v58, s[20:23], s68 offen {wflags}", "wq1")
    a("s_load_dword s6, s[58:59], 0")
    a("s_lshl_b32 s7, s2, 2")
    a("s_load_dword s71, s[36:37], s7")
    a("s_cmp_ge_u32 s3, 4")
    a("s_cselect_b32 s28, s50, s48"); a("s_cselect_b32 s29, s51, s49"); a("s_and_b32 s29, s29, 0xffff")
    a(f"s_mov_b32 s30, {512*1792*2}"); a("s_mov_b32 s31, 0x20000")
    vm(f"buffer_load_dwordx4 v[28:31], v60, s[28:31], s69 offen {wflags}", "gu0")
    vm(f"buffer_load_dwordx4 v[32:35], v61, s[28:31], s69 offen {wflags}", "gu1")
    srd(32, 52, 512 * 1792 * 2)
    srd(12, 38, 64 << 20)
    srd(16, 40, 64 << 20)
    srd(24, 44, 4 << 20)
    srd(60, 54, 1024)
    srd(64, 58, WS_SIZE)
    a("s_add_u32 s7, s70, 4096")
    for i in range(8):
        so = "s70" if i < 4 else "s7"
        vm(f"buffer_load_dword v{12+i}, v62, s[32:35], {so} offen offset:{(i%4)*1024} {wflags}", f"wd{i}")
    a("""
    s_lshl_b32 s40, s4, 23
    s_lshl_b32 s7, s5, 18
    s_add_u32 s40, s40, s7
    s_lshl_b32 s7, s3, 15
    s_add_u32 s40, s40, s7
    """)
    for g in range(1, 8):
        a(f"s_add_u32 s{40+g}, s40, {g*4096}")
    for n in range(W0):
        ld_tile(*ring_seq[n])
    a("v_mov_b32 v4, 0"); a("v_mov_b32 v5, 0"); a(f"v_mov_b32 v6, {L_FLAG}")
    a("ds_write_b64 v6, v[4:5]")
    a("""
    v_and_b32 v5, 3, v1
    v_mov_b32 v8, 0x0c0c0c0c
    v_mov_b32 v9, 0x0c0c0c0c
    v_mov_b32 v10, 0x0c0c0c0c
    v_mov_b32 v11, 0x0c0c0c0c
    v_mov_b32 v4, 0x0c0c0100
    v_mov_b32 v6, 0x01000c0c
    v_mov_b32 v7, 0x0c0c0302
    v_mov_b32 v63, 0x03020c0c
    v_cmp_eq_u32 vcc, 0, v5
    v_cndmask_b32 v8, v8, v4, vcc
    v_cndmask_b32 v10, v10, v7, vcc
    v_cmp_eq_u32 vcc, 1, v5
    v_cndmask_b32 v8, v8, v6, vcc
    v_cndmask_b32 v10, v10, v63, vcc
    v_cmp_eq_u32 vcc, 2, v5
    v_cndmask_b32 v9, v9, v4, vcc
    v_cndmask_b32 v11, v11, v7, vcc
    v_cmp_eq_u32 vcc, 3, v5
    v_cndmask_b32 v9, v9, v6, vcc
    v_cndmask_b32 v11, v11, v63, vcc
    """)
    T = slot(40)
    X = list(range(T, T + 8))
    wait_vm("x")
    for i in range(4):
        a(f"v_lshlrev_b32 v{X[2*i]}, 16, v{52+i}")
        a(f"v_and_b32 v{X[2*i+1]}, 0xffff0000, v{52+i}")
    S, S2, TM, MEAN = T + 8, T + 9, T + 10, T + 11
    a(f"v_add_f32 v{S}, v{X[0]}, v{X[1]}")
    a(f"v_add_f32 v{S2}, v{X[2]}, v{X[3]}")
    a(f"v_add_f32 v{TM}, v{X[4]}, v{X[5]}")
    a(f"v_add_f32 v{MEAN}, v{X[6]}, v{X[7]}")
    a(f"v_add_f32 v{S}, v{S}, v{S2}")
    a(f"v_add_f32 v{TM}, v{TM}, v{MEAN}")
    a(f"v_add_f32 v{S}, v{S}, v{TM}")
    wave_sum([S], [TM])
    a(f"v_mul_f32 v{MEAN}, 0x3b000000, v{S}")
    D = list(range(T + 12, T + 20))
    for i in range(8):
        a(f"v_sub_f32 v{D[i]}, v{X[i]}, v{MEAN}")
    a(f"v_mul_f32 v{S}, v{D[0]}, v{D[0]}")
    a(f"v_mul_f32 v{S2}, v{D[1]}, v{D[1]}")
    for i in range(2, 8, 2):
        a(f"v_fmac_f32 v{S}, v{D[i]}, v{D[i]}")
        a(f"v_fmac_f32 v{S2}, v{D[i+1]}, v{D[i+1]}")
    a(f"v_add_f32 v{S}, v{S}, v{S2}")
    wave_sum([S], [TM])
    a(f"v_mul_f32 v{S}, 0x3b000000, v{S}")
    bf16r(S, S)
    a(f"v_add_f32 v{S}, 0x3727c5ac, v{S}")
    bf16r(S, S)
    a(f"v_sqrt_f32 v{S}, v{S}")
    bf16r(S, S)
    bf16r(MEAN, MEAN)
    a(f"v_rcp_f32 v{S2}, v{S}")
    for i in range(8):
        a(f"v_sub_f32 v{D[i]}, v{X[i]}, v{MEAN}")
    for i in range(0, 8, 2):
        a(f"v_cvt_pk_bf16_f32 v{TM}, v{D[i]}, v{D[i+1]}")
        a(f"v_lshlrev_b32 v{D[i]}, 16, v{TM}")
        a(f"v_and_b32 v{D[i+1]}, 0xffff0000, v{TM}")
    for i in range(8):
        a(f"v_mul_f32 v{X[i]}, v{D[i]}, v{S2}")
        a(f"v_fma_f32 v{D[i]}, -v{X[i]}, v{S}, v{D[i]}")
        a(f"v_fmac_f32 v{X[i]}, v{D[i]}, v{S2}")
    for i in range(0, 8, 2):
        a(f"v_cvt_pk_bf16_f32 v{TM}, v{X[i]}, v{X[i+1]}")
        a(f"v_lshlrev_b32 v{X[i]}, 16, v{TM}")
        a(f"v_and_b32 v{X[i+1]}, 0xffff0000, v{TM}")
    a(f"v_lshlrev_b32 v{TM}, 5, v1")
    a(f"ds_write_b128 v{TM}, v[{X[0]}:{X[3]}] offset:{L_XN}")
    a(f"ds_write_b128 v{TM}, v[{X[4]}:{X[7]}] offset:{L_XN+16}")
    a("v_lshlrev_b32 v56, 2, v56")
    XA, XB, XC, XD = T + 20, T + 21, T + 22, T + 23
    a(f"ds_read_b32 v{XA}, v56 offset:{L_XN}")
    a(f"ds_read_b32 v{XB}, v56 offset:{L_XN+1024}")
    a(f"ds_read_b32 v{XC}, v62 offset:{L_XN}")
    a(f"ds_read_b32 v{XD}, v62 offset:{L_XN+1024}")
    def gemv(acc, w0, w1, x0, x1):
        for i in range(4):
            a(f"v_lshlrev_b32 v{TM}, 16, v{w0+i}")
            a(f"v_and_b32 v{S}, 0xffff0000, v{w0+i}")
            a(f"v_mul_f32 v{acc+2*i}, v{TM}, v{x0}")
            a(f"v_mul_f32 v{acc+2*i+1}, v{S}, v{x0}")
            a(f"v_lshlrev_b32 v{TM}, 16, v{w1+i}")
            a(f"v_and_b32 v{S}, 0xffff0000, v{w1+i}")
            a(f"v_fmac_f32 v{acc+2*i}, v{TM}, v{x1}")
            a(f"v_fmac_f32 v{acc+2*i+1}, v{S}, v{x1}")
    wait_vm("wq1", "lgkmcnt(0)")
    gemv(36, 20, 24, XA, XB)
    wave_sum(list(range(36, 44)), [], rows=False, full=False, first=("quad_perm:[2,3,0,1]", "row_ror:4", "row_ror:8"))
    a(f"v_lshrrev_b32 v{TM}, 4, v0")
    a(f"v_lshlrev_b32 v{TM}, 6, v{TM}")
    a(f"v_and_b32 v{S}, 15, v1")
    a(f"v_lshl_add_u32 v{TM}, v{S}, 5, v{TM}")
    a(f"v_cmp_gt_u32 vcc, 2, v{S}")
    a("s_and_saveexec_b64 s[48:49], vcc")
    a(f"ds_write_b128 v{TM}, v[36:39] offset:{L_QP}")
    a(f"ds_write_b128 v{TM}, v[40:43] offset:{L_QP+16}")
    a("s_mov_b64 exec, s[48:49]")
    wait_vm("gu1")
    gemv(44, 28, 32, XC, XD)
    wave_sum(list(range(44, 52)), [], rows=False, full=False)
    a(f"v_lshrrev_b32 v{TM}, 4, v0")
    a(f"v_lshlrev_b32 v{TM}, 5, v{TM}")
    a(f"v_and_b32 v{S}, 15, v1")
    a(f"v_cmp_eq_u32 vcc, 0, v{S}")
    a("s_and_saveexec_b64 s[48:49], vcc")
    a(f"ds_write_b128 v{TM}, v[44:47] offset:{L_FP}")
    a(f"ds_write_b128 v{TM}, v[48:51] offset:{L_FP+16}")
    a("s_mov_b64 exec, s[48:49]")
    a("s_waitcnt lgkmcnt(0)")
    a(f"s_add_u32 s6, s6, {TAGSTEP}")
    a("s_barrier")
    stamp()
    a("s_cmp_eq_u32 s3, 0")
    a.fence()
    a("s_cbranch_scc0 L_not0")
    a(f"v_and_b32 v{S}, 15, v1")
    a(f"v_lshrrev_b32 v{TM}, 4, v1")
    a(f"v_lshlrev_b32 v{TM}, 9, v{TM}")
    a(f"v_lshl_add_u32 v{TM}, v{S}, 2, v{TM}")
    for i in range(8):
        a(f"ds_read_b32 v{X[i]}, v{TM} offset:{L_QP + i*64}")
    a("s_waitcnt lgkmcnt(0)")
    for i in (0, 2, 4, 6): a(f"v_add_f32 v{X[i]}, v{X[i]}, v{X[i+1]}")
    a(f"v_add_f32 v{X[0]}, v{X[0]}, v{X[2]}"); a(f"v_add_f32 v{X[4]}, v{X[4]}, v{X[6]}")
    a(f"v_add_f32 v{X[0]}, v{X[0]}, v{X[4]}")
    wave_sum([X[0]], [X[1]], first=())
    a(f"v_mov_b32 v{X[1]}, v{X[0]} quad_perm:[1,1,3,3] {DPP}")
    a(f"v_cvt_pk_bf16_f32 v{X[2]}, v{X[0]}, v{X[1]}")
    a(f"v_mov_b32 v{X[3]}, s6")
    a(f"v_lshlrev_b32 v{TM}, 2, v1")
    a("s_lshl_b32 s7, s4, 11"); a("s_lshl_b32 s48, s5, 6"); a("s_add_u32 s48, s48, s7"); a(f"s_add_u32 s48, s48, {WS_Q}")
    a(f"s_add_u32 s7, s7, {WS_Q}")
    a(f"v_and_b32 v{S}, 0x31, v1")
    a(f"v_cmp_eq_u32 vcc, 0, v{S}")
    a("s_and_saveexec_b64 s[50:51], vcc")
    a(f"buffer_store_dwordx2 v[{X[2]}:{X[3]}], v{TM}, s[64:67], s48 offen sc1")
    a("s_mov_b64 exec, s[50:51]")
    a(f"v_lshlrev_b32 v{TM}, 1, v2")
    a(f"s_mov_b32 s49, {spin}")
    a.label("L_qpoll")
    a(f"buffer_load_dwordx4 v[{X[0]}:{X[3]}], v{TM}, s[64:67], s7 offen sc1")
    a(f"buffer_load_dwordx4 v[{X[4]}:{X[7]}], v{TM}, s[64:67], s7 offen offset:16 sc1")
    a("s_waitcnt vmcnt(0)")
    a(f"v_xor_b32 v{S}, s6, v{X[1]}")
    a(f"v_xor_b32 v{S2}, s6, v{X[3]}")
    a(f"v_or_b32 v{S}, v{S}, v{S2}")
    a(f"v_xor_b32 v{S2}, s6, v{X[5]}")
    a(f"v_or_b32 v{S}, v{S}, v{S2}")
    a(f"v_xor_b32 v{S2}, s6, v{X[7]}")
    a(f"v_or_b32 v{S}, v{S}, v{S2}")
    a(f"v_cmp_ne_u32 vcc, 0, v{S}")
    a("s_sub_u32 s49, s49, 1")
    a("s_cbranch_scc1 L_qdone")
    a("s_nop 2")
    a("s_cbranch_vccz L_qdone")
    a("s_sleep 2")
    a("s_branch L_qpoll")
    a.label("L_qdone")
    a(f"v_mov_b32 v{X[1]}, v{X[2]}")
    a(f"v_mov_b32 v{X[2]}, v{X[4]}")
    a(f"v_mov_b32 v{X[3]}, v{X[6]}")
    a(f"ds_write_b128 v3, v[{X[0]}:{X[3]}] offset:{L_QB}")
    a(f"v_mov_b32 v{S}, 1"); a(f"v_mov_b32 v{TM}, {L_FLAG}")
    a("s_waitcnt lgkmcnt(0)")
    a(f"ds_write_b32 v{TM}, v{S}")
    stamp()
    a.fence()
    a("s_branch L_issue")
    a.label("L_not0")
    a("s_cmp_eq_u32 s3, 1")
    a("s_cbranch_scc0 L_issue")
    a(f"v_and_b32 v{S}, 7, v1")
    a(f"v_bfe_u32 v{S2}, v1, 3, 1")
    a(f"v_lshrrev_b32 v{TM}, 4, v1")
    a(f"v_lshlrev_b32 v{TM}, 7, v{TM}")
    a(f"v_lshl_add_u32 v{TM}, v{S2}, 9, v{TM}")
    a(f"v_lshl_add_u32 v{TM}, v{S}, 2, v{TM}")
    for i in range(4):
        a(f"ds_read_b32 v{X[i]}, v{TM} offset:{L_FP + i*32}")
    a("s_waitcnt lgkmcnt(0)")
    a(f"v_add_f32 v{X[0]}, v{X[0]}, v{X[1]}"); a(f"v_add_f32 v{X[2]}, v{X[2]}, v{X[3]}")
    a(f"v_add_f32 v{X[0]}, v{X[0]}, v{X[2]}")
    wave_sum([X[0]], [X[1]], first=())
    bf16r(X[0], X[0])
    a(f"v_mov_b32 v{X[1]}, v{X[0]} row_ror:8 {DPP}")
    a(f"v_mul_f32 v{X[2]}, v{X[0]}, v{X[0]}")
    a(f"v_mul_f32 v{X[2]}, v{X[2]}, v{X[0]}")
    a(f"v_mov_b32 v{X[3]}, 0x3d372713")
    a(f"v_fma_f32 v{X[2]}, v{X[2]}, v{X[3]}, v{X[0]}")
    a(f"v_mul_f32 v{X[2]}, 0xc0135761, v{X[2]}")
    a(f"v_exp_f32 v{X[2]}, v{X[2]}")
    a(f"v_add_f32 v{X[2]}, 1.0, v{X[2]}")
    a(f"v_rcp_f32 v{X[2]}, v{X[2]}")
    a(f"v_mul_f32 v{X[2]}, v{X[2]}, v{X[0]}")
    bf16r(X[2], X[2])
    a(f"v_mul_f32 v{X[2]}, v{X[2]}, v{X[1]}")
    bf16r(X[2], X[2])
    a(f"v_lshlrev_b32 v{TM}, 2, v1")
    a(f"v_cmp_gt_u32 vcc, 8, v1")
    a("s_and_saveexec_b64 s[50:51], vcc")
    a(f"ds_write_b32 v{TM}, v{X[2]} offset:{L_H}")
    a("s_mov_b64 exec, s[50:51]")
    a(f"v_mov_b32 v{S}, 1"); a(f"v_mov_b32 v{TM}, {L_FLAG}")
    a("s_waitcnt lgkmcnt(0)")
    a(f"ds_write_b32 v{TM}, v{S} offset:4")
    a.fence()
    a.label("L_issue")
    a("s_waitcnt lgkmcnt(0)")
    for n in range(W0, 48):
        if n >= W:
            wait_vm(f"{ring_seq[n-W][0]}{ring_seq[n-W][1]}")
        ld_tile(*ring_seq[n])
    a(f"v_mov_b32 v56, {L_FLAG}")
    a(f"s_mov_b32 s49, {spin*8}")
    a.label("L_fpoll")
    a("ds_read_b64 v[58:59], v56")
    a("s_waitcnt lgkmcnt(0)")
    a("v_and_b32 v58, v58, v59")
    a("v_readfirstlane_b32 s7, v58")
    a("s_sub_u32 s49, s49, 1")
    a("s_cbranch_scc1 L_fdone")
    a("s_cmp_eq_u32 s7, 1")
    a("s_cbranch_scc1 L_fdone")
    a("s_sleep 1")
    a("s_branch L_fpoll")
    a.label("L_fdone")
    stamp()
    a(f"ds_read_b128 v[4:7], v3 offset:{L_QB}")
    a("v_mov_b32 v56, 0")
    a(f"ds_read_b128 v[36:39], v56 offset:{L_H}")
    a(f"ds_read_b128 v[40:43], v56 offset:{L_H+16}")
    wait_vm("wd7", "lgkmcnt(0)")
    for i in range(8):
        a(f"v_lshlrev_b32 v56, 16, v{12+i}")
        a(f"v_and_b32 v57, 0xffff0000, v{12+i}")
        if i == 0:
            a("v_mul_f32 v44, v56, v36"); a("v_mul_f32 v46, v57, v36")
        else:
            a(f"v_fmac_f32 v44, v56, v{36+i}"); a(f"v_fmac_f32 v46, v57, v{36+i}")
    a("v_mov_b32 v56, 0xffffff00"); a("v_mov_b32 v57, 0xa5")
    a("v_and_or_b32 v44, v44, v56, v57"); a("v_and_or_b32 v46, v46, v56, v57")
    a("v_mov_b32 v45, s6"); a("v_mov_b32 v47, s6")
    a("v_and_b32 v56, 255, v0"); a("v_lshlrev_b32 v56, 13, v56")
    a("s_lshl_b32 s7, s2, 4"); a(f"s_add_u32 s68, s7, {WS_IN2}"); a("s_add_u32 s7, s68, 4096")
    a("s_cmp_ge_u32 s3, 4"); a(f"s_cselect_b32 s7, s7, {OOB}")
    vm("buffer_store_dwordx4 v[44:47], v56, s[64:67], s7 offen sc1", "fst")
    MX = 52
    a(f"v_mov_b32 v{MX}, 0xff800000")
    a(f"s_mov_b32 s69, {SCALE}")
    def qk_mfma(i):
        wait_vm(f"k{i}")
        d = 36 + 4 * (i % 4)
        a(f"v_mfma_f32_16x16x32_bf16 v[{d}:{d+3}], v[{slot(i)}:{slot(i)+3}], v[4:7], 0")
    def qk_post(i):
        for k, t in ((i, 54), (i + 1, 55)):
            d = 36 + 4 * (k % 4)
            a(f"v_mov_b32 v{t}, v{d} quad_perm:[0,0,0,0] {DPP}")
            a(f"v_add_f32 v{t}, v{d+1}, v{t} quad_perm:[1,1,1,1] {DPP}")
            a(f"v_add_f32 v{t}, v{d+2}, v{t} quad_perm:[2,2,2,2] {DPP}")
            a(f"v_add_f32 v{t}, v{d+3}, v{t} quad_perm:[3,3,3,3] {DPP}")
        a("v_cvt_pk_bf16_f32 v56, v54, v55")
        a("v_lshlrev_b32 v54, 16, v56")
        a("v_and_b32 v55, 0xffff0000, v56")
        a("v_mul_f32 v54, s69, v54")
        a("v_mul_f32 v55, s69, v55")
        a(f"v_cvt_pk_bf16_f32 v{20 + i//2}, v54, v55")
        a(f"v_max3_f32 v{MX}, v{MX}, v54, v55")
    qk_mfma(0); qk_mfma(1)
    for i in range(0, 32, 2):
        if i + 2 < 32:
            qk_mfma(i + 2); qk_mfma(i + 3)
        if i < 16:
            ld_tile("v", 16 + i, i); ld_tile("v", 17 + i, i + 1)
        qk_post(i)
    WO = slot(16)
    a("s_lshl_b32 s7, s4, 19"); a("s_lshl_b32 s48, s5, 14"); a("s_add_u32 s7, s7, s48")
    a("s_cmp_lt_u32 s3, 4"); a(f"s_cselect_b32 s7, s7, {OOB}")
    for i in range(16):
        if i % 4 == 0 and i: a("s_add_u32 s7, s7, 4096")
        vm(f"buffer_load_dword v{WO+i}, v62, s[24:27], s7 offen offset:{(i%4)*1024} {wflags}", f"wo{i}")
    stamp()
    wave_sum([MX], [53], op="v_max_f32", first=())
    bf16r(MX, MX)
    a("v_bfe_u32 v54, v1, 2, 2")
    a("v_lshlrev_b32 v54, 5, v54")
    a("s_lshl_b32 s7, s3, 2")
    a("v_add_u32 v55, s7, v54")
    a(f"ds_write_b32 v55, v{MX} offset:{L_MX}")
    a("s_waitcnt lgkmcnt(0)")
    a("s_barrier")
    a(f"ds_read_b128 v[36:39], v54 offset:{L_MX}")
    a(f"ds_read_b128 v[40:43], v54 offset:{L_MX+16}")
    a("s_waitcnt lgkmcnt(0)")
    a(f"v_max3_f32 v{MX}, v36, v37, v38")
    a(f"v_max3_f32 v{MX}, v{MX}, v39, v40")
    a(f"v_max3_f32 v{MX}, v{MX}, v41, v42")
    a(f"v_max_f32 v{MX}, v{MX}, v43")
    a(f"s_mov_b32 s69, {LOG2E}")
    a(f"v_mul_f32 v53, s69, v{MX}")
    LS = 57
    a(f"v_mov_b32 v{LS}, 0"); a("v_mov_b32 v58, 0")
    for i in range(16):
        a(f"v_lshlrev_b32 v36, 16, v{20+i}")
        a(f"v_and_b32 v37, 0xffff0000, v{20+i}")
        a("v_fma_f32 v36, v36, s69, -v53")
        a("v_fma_f32 v37, v37, s69, -v53")
        a("v_exp_f32 v36, v36")
        a("v_exp_f32 v37, v37")
        a(f"v_add_f32 v{LS}, v{LS}, v36")
        a("v_add_f32 v58, v58, v37")
        a(f"v_cvt_pk_bf16_f32 v{20+i}, v36, v37")
    a(f"v_add_f32 v{LS}, v{LS}, v58")
    wave_sum([LS], [58], first=())
    a(f"ds_write_b32 v55, v{LS} offset:{L_LP}")
    for i in range(8): a(f"v_mov_b32 v{12+i}, 0")
    stamp()
    for i in range(32):
        sl = slot(32 + i) if i < 16 else slot(i - 16)
        x = 36 + 2 * (i % 4)
        s0, s1 = (8, 9) if i % 2 == 0 else (10, 11)
        a(f"v_perm_b32 v{x}, v{20+i//2}, v{20+i//2}, v{s0}")
        a(f"v_perm_b32 v{x+1}, v{20+i//2}, v{20+i//2}, v{s1}")
        wait_vm(f"v{i}")
        a(f"v_mfma_f32_16x16x16_bf16 v[12:15], v[{x}:{x+1}], v[{sl}:{sl+1}], v[12:15]")
        a(f"v_mfma_f32_16x16x16_bf16 v[16:19], v[{x}:{x+1}], v[{sl+2}:{sl+3}], v[16:19]")
    a("v_lshlrev_b32 v36, 5, v0")
    a(f"ds_write_b128 v36, v[12:15] offset:{L_OP}")
    a(f"ds_write_b128 v36, v[16:19] offset:{L_OP+16}")
    a("s_waitcnt lgkmcnt(0)")
    a("s_barrier")
    stamp()
    a("v_mov_b32 v56, 0xffffff00"); a("v_mov_b32 v57, 0xa5")
    a("s_cmp_lt_u32 s3, 4")
    a.fence()
    a("s_cbranch_scc0 L_hi1")
    a("v_lshlrev_b32 v36, 3, v0")
    for v in range(8):
        a(f"ds_read_b64 v[{20+2*v}:{21+2*v}], v36 offset:{L_OP + v*2048}")
    a("v_lshlrev_b32 v37, 9, v0")
    a("s_lshl_b32 s7, s4, 17"); a(f"s_add_u32 s7, s7, {WS_IN1}"); a("s_lshl_b32 s48, s5, 4"); a("s_add_u32 s48, s48, s7")
    a("v_mov_b32 v41, s6"); a("v_mov_b32 v43, s6")
    a("s_waitcnt lgkmcnt(0)")
    for v in (0, 2, 4, 6):
        a(f"v_pk_add_f32 v[{20+2*v}:{21+2*v}], v[{20+2*v}:{21+2*v}], v[{22+2*v}:{23+2*v}]")
    a("v_pk_add_f32 v[20:21], v[20:21], v[24:25]")
    a("v_pk_add_f32 v[28:29], v[28:29], v[32:33]")
    a("v_pk_add_f32 v[20:21], v[20:21], v[28:29]")
    a("v_and_or_b32 v40, v20, v56, v57"); a("v_and_or_b32 v42, v21, v56, v57")
    a("buffer_store_dwordx4 v[40:43], v37, s[64:67], s48 offen sc1")
    a("s_waitcnt vmcnt(1)")
    a("v_mov_b32 v44, 0x05040100"); a("v_mov_b32 v45, 0x07060302")
    WA, WB = slot(24), slot(26)
    for k in range(8):
        a(f"v_perm_b32 v{WA+k}, v{WO+2*k+1}, v{WO+2*k}, v44")
        a(f"v_perm_b32 v{WB+k}, v{WO+2*k+1}, v{WO+2*k}, v45")
    a("s_lshl_b32 s48, s5, 12"); a("s_add_u32 s7, s7, s48")
    a("v_lshlrev_b32 v36, 4, v0")
    a("s_lshl_b32 s48, s4, 2"); a("s_lshr_b32 s49, s5, 3"); a("s_add_u32 s48, s48, s49"); a("s_lshl_b32 s48, s48, 9"); a(f"s_add_u32 s48, s48, {WS_ML}")
    a("v_and_b32 v37, 31, v1"); a("v_lshlrev_b32 v37, 4, v37")
    a(f"s_mov_b32 s49, {spin}")
    a.label("L_p1")
    a("buffer_load_dwordx4 v[20:23], v36, s[64:67], s7 offen sc1")
    a("buffer_load_dwordx4 v[24:27], v37, s[64:67], s48 offen sc1")
    a("s_waitcnt vmcnt(0)")
    def check(regs, acc, tmp):
        first = True
        for r in regs:
            a(f"v_xor_b32 v{tmp}, s6, v{r+1}")
            if first:
                a(f"v_xor_b32 v{acc}, v57, v{r}"); a(f"v_and_or_b32 v{acc}, v{acc}, v59, v{tmp}")
                first = False
            else:
                a(f"v_or_b32 v{acc}, v{acc}, v{tmp}")
                a(f"v_xor_b32 v{tmp}, v57, v{r}"); a(f"v_and_or_b32 v{acc}, v{tmp}, v59, v{acc}")
        a(f"v_cmp_ne_u32 vcc, 0, v{acc}")
    a("v_mov_b32 v59, 0xff")
    check([20, 22, 24, 26], 38, 39)
    a("s_sub_u32 s49, s49, 1")
    a("s_cbranch_scc1 L_p1d")
    a("s_nop 2")
    a("s_cbranch_vccz L_p1d")
    a("s_sleep 1")
    a("s_branch L_p1")
    a.label("L_p1d")
    stamp()
    for r in (20, 22, 24, 26): a(f"v_and_b32 v{r}, v{r}, v56")
    a("v_mov_b32 v38, v24")
    wave_sum([38], [39], op="v_max_f32", full=False)
    a("v_sub_f32 v24, v24, v38")
    a("v_mul_f32 v24, s69, v24")
    a("v_exp_f32 v24, v24")
    a("v_mul_f32 v20, v20, v24"); a("v_mul_f32 v22, v22, v24"); a("v_mul_f32 v26, v26, v24")
    wave_sum([20, 22, 26], [21, 23, 27], full=False)
    a("v_rcp_f32 v24, v26")
    for r in (20, 22):
        a(f"v_mul_f32 v21, v{r}, v24")
        a(f"v_fma_f32 v23, -v21, v26, v{r}")
        a(f"v_fma_f32 v{r}, v23, v24, v21")
    a("v_cvt_pk_bf16_f32 v20, v20, v22")
    a("v_lshrrev_b32 v36, 5, v0"); a("v_lshlrev_b32 v36, 2, v36")
    a(f"ds_write_b32 v36, v20 offset:{L_O}")
    a("s_waitcnt lgkmcnt(0)")
    a("s_barrier")
    a("v_mov_b32 v36, 0")
    a(f"ds_read_b128 v[20:23], v36 offset:{L_O}")
    a(f"ds_read_b128 v[24:27], v36 offset:{L_O+16}")
    a("v_mov_b32 v40, 0"); a("v_mov_b32 v42, 0")
    a("v_lshlrev_b32 v37, 13, v0")
    a("s_waitcnt lgkmcnt(0)")
    for k in range(8):
        a(f"v_dot2_f32_bf16 v40, v{WA+k}, v{20+k}, v40")
        a(f"v_dot2_f32_bf16 v42, v{WB+k}, v{20+k}, v42")
    a("s_nop 3")
    a("v_and_or_b32 v40, v40, v56, v57"); a("v_and_or_b32 v42, v42, v56, v57")
    a("buffer_store_dwordx4 v[40:43], v37, s[64:67], s68 offen sc1")
    a.fence()
    a("s_branch L_hop2")
    a.label("L_hi1")
    a("s_cmp_eq_u32 s3, 4")
    a("s_cbranch_scc0 L_hi2")
    a(f"ds_read_b128 v[36:39], v54 offset:{L_LP}")
    a(f"ds_read_b128 v[40:43], v54 offset:{L_LP+16}")
    a("s_waitcnt lgkmcnt(0)")
    a("v_add_f32 v36, v36, v37"); a("v_add_f32 v38, v38, v39"); a("v_add_f32 v40, v40, v41"); a("v_add_f32 v42, v42, v43")
    a("v_add_f32 v36, v36, v38"); a("v_add_f32 v40, v40, v42"); a("v_add_f32 v36, v36, v40")
    a(f"v_and_or_b32 v40, v{MX}, v56, v57"); a("v_and_or_b32 v42, v36, v56, v57")
    a("v_mov_b32 v41, s6"); a("v_mov_b32 v43, s6")
    a("v_lshlrev_b32 v37, 4, v54")
    a("s_lshl_b32 s7, s4, 11"); a("s_lshl_b32 s48, s5, 4"); a("s_add_u32 s7, s7, s48"); a(f"s_add_u32 s7, s7, {WS_ML}")
    a("v_and_b32 v38, 0x33, v1")
    a("v_cmp_eq_u32 vcc, 0, v38")
    a("s_and_saveexec_b64 s[50:51], vcc")
    a("buffer_store_dwordx4 v[40:43], v37, s[64:67], s7 offen sc1")
    a("s_mov_b64 exec, s[50:51]")
    a.label("L_hi2")
    a("s_barrier")
    a("v_mov_b32 v59, 0xff")
    a.fence()
    a.label("L_hop2")
    stamp()
    a("v_lshlrev_b32 v36, 4, v0")
    a("s_lshl_b32 s7, s2, 13"); a(f"s_add_u32 s7, s7, {WS_IN2}")
    a(f"s_mov_b32 s49, {spin}")
    a.label("L_p2")
    a("buffer_load_dwordx4 v[20:23], v36, s[64:67], s7 offen sc1")
    a("s_waitcnt vmcnt(0)")
    check([20, 22], 38, 39)
    a("s_sub_u32 s49, s49, 1")
    a("s_cbranch_scc1 L_p2d")
    a("s_nop 2")
    a("s_cbranch_vccz L_p2d")
    a("s_sleep 1")
    a("s_branch L_p2")
    a.label("L_p2d")
    a("v_and_b32 v20, v20, v56"); a("v_and_b32 v21, v22, v56")
    wave_sum([20, 21], [22, 23])
    a("s_lshl_b32 s7, s3, 3"); a("v_mov_b32 v36, s7")
    a(f"ds_write_b64 v36, v[20:21] offset:{L_RED}")
    a("s_waitcnt lgkmcnt(0)")
    a("s_barrier")
    stamp()
    a("s_cmp_eq_u32 s3, 0")
    a("s_cbranch_scc0 L_end")
    a("v_and_b32 v36, 1, v1"); a("v_lshlrev_b32 v37, 2, v36")
    for v in range(8):
        a(f"ds_read_b32 v{20+v}, v37 offset:{L_RED + 8*v}")
    a("v_mov_b32 v40, s71"); a("v_lshlrev_b32 v41, 16, v40"); a("v_and_b32 v40, 0xffff0000, v40")
    a("v_cmp_eq_u32 vcc, 0, v36")
    a("v_cndmask_b32 v40, v40, v41, vcc")
    a("s_waitcnt lgkmcnt(0)")
    a("v_add_f32 v20, v20, v21"); a("v_add_f32 v22, v22, v23"); a("v_add_f32 v24, v24, v25"); a("v_add_f32 v26, v26, v27")
    a("v_add_f32 v20, v20, v22"); a("v_add_f32 v24, v24, v26")
    bf16r(20, 20); bf16r(24, 24)
    a("v_mul_f32 v25, 0xbfb8aa3b, v24")
    a("v_exp_f32 v25, v25")
    a("v_add_f32 v25, 1.0, v25")
    a("v_rcp_f32 v26, v25")
    a("v_mul_f32 v27, v24, v26")
    a("v_fma_f32 v28, -v27, v25, v24")
    a("v_fmac_f32 v27, v28, v26")
    a("v_mul_f32 v28, v24, v26")
    a("v_cmp_o_f32 vcc, v27, v27")
    a("v_cndmask_b32 v27, v28, v27, vcc")
    bf16r(27, 27)
    a("v_mul_f32 v20, v20, v27")
    bf16r(20, 20)
    a("v_add_f32 v20, v40, v20")
    a("v_cvt_pk_bf16_f32 v20, v20, v20")
    a("v_lshlrev_b32 v37, 1, v36")
    a("s_lshl_b32 s7, s2, 2")
    a("v_cmp_gt_u32 vcc, 2, v1")
    a("s_and_saveexec_b64 s[50:51], vcc")
    a("buffer_store_short v20, v37, s[60:63], s7 offen")
    a("s_mov_b64 exec, s[50:51]")
    a("v_mov_b32 v21, s6"); a("v_mov_b32 v22, 0")
    a("s_cmp_eq_u32 s2, 0"); a(f"s_cselect_b32 s7, 0, {OOB}")
    a("v_cmp_eq_u32 vcc, 0, v1")
    a("s_and_saveexec_b64 s[50:51], vcc")
    a("buffer_store_dword v21, v22, s[64:67], s7 offen")
    if stamps:
        stamp()
        a("s_waitcnt lgkmcnt(0)")
        n = stamp_n[0]
        a(f"s_mul_i32 s7, s2, {8*n}"); a(f"s_add_u32 s7, s7, {WS_STAMP}")
        for i in range(n):
            a(f"v_mov_b32 v24, s{72+2*i}"); a(f"v_mov_b32 v25, s{73+2*i}")
            a(f"buffer_store_dwordx2 v[24:25], v22, s[64:67], s7 offen offset:{8*i}")
        print("stamps:", n)
    a.label("L_end")
    a("s_endpgm")
    R('.section .rodata,"a"'); R(".p2align 6"); R(f".amdhsa_kernel {NAME}")
    R("  .amdhsa_next_free_vgpr 256"); R("  .amdhsa_next_free_sgpr 102"); R("  .amdhsa_accum_offset 256")
    R("  .amdhsa_group_segment_fixed_size 0"); R("  .amdhsa_kernarg_size 96"); R("  .amdhsa_user_sgpr_count 2")
    R("  .amdhsa_user_sgpr_kernarg_segment_ptr 1"); R("  .amdhsa_system_sgpr_workgroup_id_x 1"); R(".end_amdhsa_kernel")
    open(path, "w").write(a.text())

if __name__ == "__main__":
    gen("k1.s")
    gen("k1_st.s", stamps=True)
```

```python
import re

TRANS = ("v_exp_f32", "v_log_f32", "v_rcp_f32", "v_rsq_f32", "v_sqrt_f32", "v_sin_f32", "v_cos_f32")

def _regs(tok):
    tok = tok.strip()
    neg = tok.startswith("-")
    if neg: tok = tok[1:]
    if tok.startswith("abs(") or tok.startswith("|"):
        tok = tok.strip("|").replace("abs(", "").rstrip(")")
    m = re.fullmatch(r"([vsa])(\d+)", tok)
    if m: return [(m.group(1), int(m.group(2)))]
    m = re.fullmatch(r"([vsa])\[(\d+):(\d+)\]", tok)
    if m: return [(m.group(1), i) for i in range(int(m.group(2)), int(m.group(3)) + 1)]
    if tok in ("vcc", "vcc_lo", "vcc_hi"): return [("vcc", 0)]
    if tok in ("exec", "exec_lo", "exec_hi"): return [("exec", 0)]
    if tok == "m0": return [("m0", 0)]
    return []

class Asm:
    def __init__(self):
        self.lines = []
        self.t = 0
        self.valu_w = {}
        self.trans_w = {}
        self.mfma_w = {}
        self.mfma_c = {}
        self.valu_sw = {}
        self.store_d = {}
        self.dot_w = {}
        self.nops = 0
    def raw(self, s):
        self.lines.append(s)
    def comment(self, s):
        self.lines.append("    ; " + s)
    def label(self, name):
        self.lines.append(name + ":")
    def nop(self, n):
        while n > 0:
            k = min(n, 16)
            self.lines.append(f"    s_nop {k-1}")
            self.t += k; n -= k; self.nops += 1
    def fence(self):
        need = 0
        for r, t in self.valu_w.items(): need = max(need, t + 2 - self.t + 1)
        for r, t in self.valu_sw.items(): need = max(need, t + 5 - self.t + 1)
        for r, (t, p) in self.mfma_w.items(): need = max(need, t + {2: 5, 4: 8, 8: 12, 16: 20}[p] - self.t + 1)
        for r, t in self.store_d.items(): need = max(need, t + 2 - self.t + 1)
        for r, (t, o) in self.dot_w.items(): need = max(need, t + 3 - self.t + 1)
        if need > 0: self.nop(need)
    def __call__(self, s):
        for line in s.strip().split("\n"):
            line = line.split(";")[0].strip()
            if line: self.emit(line)
    def emit(self, line):
        parts = line.split(None, 1)
        op = parts[0]
        rest = parts[1] if len(parts) > 1 else ""
        ops = [o.strip() for o in re.split(r",(?![^\[]*\])", rest)] if rest else []
        mods = ""
        if ops:
            last = ops[-1].split(None, 1)
            ops[-1] = last[0]
            mods = last[1] if len(last) > 1 else ""
        is_dpp = ("quad_perm" in mods or "row_" in mods or "wave_" in mods or op.endswith("_dpp"))
        reads, writes = [], []
        kind = "other"
        if op.startswith("v_mfma"):
            kind = "mfma"; writes = _regs(ops[0]); ab = _regs(ops[1]) + _regs(ops[2]); c = _regs(ops[3]); reads = ab + c
        elif op.startswith("v_permlane") and "swap" in op:
            kind = "perm"; writes = _regs(ops[0]) + _regs(ops[1]); reads = list(writes)
        elif op.startswith("v_readlane") or op.startswith("v_readfirstlane"):
            kind = "rdlane"; writes = _regs(ops[0]); reads = sum((_regs(o) for o in ops[1:]), [])
        elif op.startswith("v_cmp"):
            kind = "valu"; writes = _regs(ops[0]); reads = sum((_regs(o) for o in ops[1:]), [])
        elif op.startswith("v_"):
            kind = "valu"; writes = _regs(ops[0]); reads = sum((_regs(o) for o in ops[1:]), [])
            if "_co_" in op: writes += _regs(ops[1])
            if op.startswith("v_fmac") or op.startswith("v_dot2c") or op.startswith("v_pk_fmac") or (is_dpp and ("bank_mask" in mods or "row_mask" in mods)):
                reads += _regs(ops[0])
        elif op.startswith("buffer_load") or op.startswith("global_load"):
            kind = "vmem"; writes = _regs(ops[0]); reads = sum((_regs(o) for o in ops[1:]), [])
        elif op.startswith("buffer_store") or op.startswith("global_store") or op.startswith("buffer_atomic") or op.startswith("global_atomic"):
            kind = "vmem"; reads = sum((_regs(o) for o in ops), [])
        elif op.startswith("ds_read") or "_rtn" in op or op.startswith("ds_bpermute") or op.startswith("ds_swizzle") or op.startswith("ds_permute"):
            kind = "ds"; writes = _regs(ops[0]); reads = sum((_regs(o) for o in ops[1:]), [])
        elif op.startswith("ds_"):
            kind = "ds"; reads = sum((_regs(o) for o in ops), [])
        elif op.startswith("s_"):
            kind = "salu"
            reads = sum((_regs(o) for o in ops), [])
        need = 0
        def req(tprev, ws):
            nonlocal need
            need = max(need, ws - (self.t - tprev - 1))
        valu_like = kind in ("valu", "perm", "rdlane")
        for r in set(reads) | set(writes):
            if r in self.dot_w:
                t0, o0 = self.dot_w[r]
                same_acc = op == o0 and len(ops) > 3 and r in _regs(ops[3]) and r not in _regs(ops[1]) + _regs(ops[2])
                if not same_acc: req(t0, 3)
        for r in reads:
            if r[0] in ("v", "a"):
                if r in self.valu_w:
                    if kind == "mfma": req(self.valu_w[r], 2)
                    if kind == "perm": req(self.valu_w[r], 2)
                    if kind == "rdlane": req(self.valu_w[r], 1)
                    if kind == "valu" and is_dpp and r in _regs(ops[1]): req(self.valu_w[r], 2)
                if r in self.trans_w and valu_like and op not in TRANS: req(self.trans_w[r], 1)
                if r in self.trans_w and kind in ("mfma", "vmem", "ds"): req(self.trans_w[r], 2)
                if r in self.mfma_w:
                    t, p = self.mfma_w[r]
                    if kind == "mfma" and r in c and r not in ab and writes == c and self.mfma_w.get(c[0], (None, None))[0] == t:
                        req(t, 2 if p == 2 else 0)
                    elif kind == "mfma" and r in c and r not in ab:
                        req(t, {2: 4, 4: 6, 8: 10, 16: 18}[p])
                    else:
                        req(t, {2: 5, 4: 8, 8: 12, 16: 20}[p])
            else:
                if r in self.valu_sw:
                    if valu_like or kind == "mfma":
                        req(self.valu_sw[r], 4 if kind == "rdlane" else 2)
                    if kind == "vmem": req(self.valu_sw[r], 5)
                    if kind == "salu": req(self.valu_sw[r], 1)
        for r in writes:
            if r[0] in ("v", "a"):
                if r in self.mfma_w and kind != "mfma":
                    t, p = self.mfma_w[r]; req(t, {2: 5, 4: 8, 8: 12, 16: 20}[p])
                if r in self.mfma_w and kind == "mfma" and not (r in c):
                    t, p = self.mfma_w[r]; req(t, {2: 5, 4: 8, 8: 12, 16: 20}[p])
                if r in self.mfma_c and valu_like:
                    t, p = self.mfma_c[r]; req(t, {2: 1, 4: 3, 8: 7, 16: 15}[p])
                if r in self.store_d: req(self.store_d[r], 2)
        if need > 0: self.nop(need)
        self.lines.append("    " + line)
        t = self.t
        if kind == "mfma":
            p = 4
            if "32x32" in op: p = 8
            if "4x4x" in op: p = 2
            if op.endswith("x4_f32") and "16x16" in op: p = 8
            for r in writes:
                self.mfma_w[r] = (t, p); self.valu_w.pop(r, None); self.trans_w.pop(r, None)
            for r in c: self.mfma_c[r] = (t, p)
        elif valu_like:
            for r in writes:
                if r[0] in ("v", "a"):
                    self.valu_w[r] = t; self.mfma_w.pop(r, None)
                    if op in TRANS: self.trans_w[r] = t
                    else: self.trans_w.pop(r, None)
                    if op.startswith("v_dot"): self.dot_w[r] = (t, op)
                    else: self.dot_w.pop(r, None)
                else:
                    self.valu_sw[r] = t
        elif kind in ("vmem", "ds"):
            for r in writes:
                self.valu_w.pop(r, None); self.mfma_w.pop(r, None); self.trans_w.pop(r, None)
            if kind == "vmem" and "store" in op and ("x4" in op or "x3" in op):
                d = _regs(ops[0]) if op.startswith("buffer") else _regs(ops[1])
                for r in d: self.store_d[r] = t
        elif kind == "salu":
            if ops and not op.startswith("s_cmp") and not op.startswith("s_cbranch") and not op.startswith("s_waitcnt"):
                for r in _regs(ops[0]): self.valu_sw.pop(r, None)
        if op == "s_nop":
            self.t += int(ops[0], 0) + 1
        else:
            self.t += 1
    def text(self):
        return "\n".join(self.lines) + "\n"
```

```python
import sys
from asmlib import Asm
NAME = "recurrent_scan__gqa_block_cached__glu_gated_geglu__decode_kernel"

WS_Q = 0x10000
WS_G = 0x20000
WS_IN1 = 0x200000
WS_IN2 = 0x300000
WS_STAMP = 0x8000000
WS_SIZE = 0x10000000
TAGSTEP = 0x9E3779B1
LOG2E = 0x3FB8AA3B
SCALE = 0x3DB504F3
OOB = 0x40000000

L_XN = 0
L_QP = 2048
L_GP = 4096
L_CNT = 6144
L_MX = 6208
L_LP = 6336
L_RED = 6464
L_OP = 8192
L_QG = 24576
L_F = 32768
L_WO = 49152
LDS_BYTES = 65536

DPP = "row_mask:0xf bank_mask:0xf"

def gen(path, W0=8, W=8, stamps=False, kvflags="nt", wflags="nt", spin=400000, hmap="xcd",
        poll1=22, qstep=40, warm=True, mlstep=58, fstep=12, gstep=50, wostep=56, warmstep=60, skip=()):
    a = Asm()
    R = a.raw
    header = open("recurrent_scan__gqa_block_cached__glu_gated_geglu__decode.s.ref").read().split("; Override")[0]
    R(header.rstrip())
    R(f"; @launch grid=(256,1,1) block=(512,1,1) lds={LDS_BYTES}")
    R('.amdgcn_target "amdgcn-amd-amdhsa--gfx950"')
    R(".text"); R(f".globl {NAME}"); R(".p2align 8"); R(f".type {NAME},@function"); R(f"{NAME}:")

    st = {"issued": [], "done": -1}
    def vm(line, name):
        a(line); st["issued"].append(name)
    def wait_vm(name, extra=""):
        idx = st["issued"].index(name)
        if idx <= st["done"]:
            if extra: a(f"s_waitcnt {extra}")
            return
        n = len(st["issued"]) - 1 - idx
        a(f"s_waitcnt vmcnt({min(n, 63)}) {extra}")
        st["done"] = idx
    NST = 12
    def stamp(i):
        if stamps:
            a(f"s_memrealtime s[{72+2*i}:{73+2*i}]")
    def store_stamps(slots, src=None):
        a("s_waitcnt lgkmcnt(0)")
        a(f"s_mul_i32 s7, s2, {8*NST}"); a(f"s_add_u32 s7, s7, {WS_STAMP}")
        for i in slots:
            s = i if src is None else src
            a(f"v_mov_b32 v24, s{72+2*s}"); a(f"v_mov_b32 v25, s{73+2*s}")
            a(f"buffer_store_dwordx2 v[24:25], v22, s[64:67], s7 offen offset:{8*i}")
    def allred(v, tmp, op="v_add_f32", first=(), rows=True, full=True):
        for m in first:
            for r in v:
                a(f"{op} v{r}, v{r}, v{r} {m} {DPP}")
        for en, ins in ((rows, "v_permlane16_swap_b32"), (full, "v_permlane32_swap_b32")):
            if en:
                for r, t in zip(v, tmp): a(f"v_mov_b32 v{t}, v{r}")
                for r, t in zip(v, tmp): a(f"{ins} v{r}, v{t}")
                for r, t in zip(v, tmp): a(f"{op} v{r}, v{r}, v{t}")
    def swapred(regs, ins):
        out = []
        for x, y in zip(regs[0::2], regs[1::2]): a(f"{ins} v{x}, v{y}")
        for x, y in zip(regs[0::2], regs[1::2]):
            a(f"v_add_f32 v{x}, v{x}, v{y}"); out.append(x)
        return out
    def bf16r(dst, src):
        a(f"v_cvt_pk_bf16_f32 v{dst}, v{src}, v{src}")
        a(f"v_and_b32 v{dst}, 0xffff0000, v{dst}")
    lbl = [0]
    def newlabel(p="L"):
        lbl[0] += 1; return f"{p}_{lbl[0]}"
    def branch(op, target):
        a.fence(); a(f"{op} {target}")
    def label(name):
        a.fence(); a.label(name)
    def lds_spin(off, val, vt0, vt1):
        lo, dn = newlabel("L_sp"), newlabel("L_spd")
        a(f"v_mov_b32 v{vt0}, {off}")
        a(f"s_mov_b32 s49, {spin*8}")
        label(lo)
        a(f"ds_read_b32 v{vt1}, v{vt0}")
        a("s_waitcnt lgkmcnt(0)")
        a(f"v_readfirstlane_b32 s7, v{vt1}")
        a("s_sub_u32 s49, s49, 1")
        a(f"s_cbranch_scc1 {dn}")
        a(f"s_cmp_eq_u32 s7, {val}")
        a(f"s_cbranch_scc1 {dn}")
        a("s_sleep 1")
        a(f"s_branch {lo}")
        label(dn)
    def lds_inc(off, vt0, vt1, rtn=None):
        a(f"v_mov_b32 v{vt0}, {off}"); a(f"v_mov_b32 v{vt1}, 1")
        a("s_mov_b64 exec, 1")
        if rtn is None: a(f"ds_add_u32 v{vt0}, v{vt1}")
        else: a(f"ds_add_rtn_u32 v{rtn}, v{vt0}, v{vt1}")
        a("s_mov_b64 exec, -1")

    RING = 64
    def slot(i): return RING + 4 * i
    def tname(n): return f"t{n}"
    def ld_tile(n):
        kind, i = ("k", n) if n < 32 else ("v", n - 32)
        srd = "s[12:15]" if kind == "k" else "s[16:19]"
        vo = "v2" if kind == "k" else "v3"
        r = slot(n % 48)
        vm(f"buffer_load_dwordx4 v[{r}:{r+3}], {vo}, {srd}, s{40 + i // 4} offen offset:{(i % 4) * 1024} {kvflags}", tname(n))

    a("s_cmp_ge_u32 s2, 256")
    a("s_cbranch_scc1 L_end")
    stamp(0)
    a("""
    s_load_dwordx16 s[36:51], s[0:1], 0
    s_load_dwordx8 s[52:59], s[0:1], 64
    v_lshrrev_b32 v4, 6, v0
    v_and_b32 v1, 63, v0
    v_readfirstlane_b32 s3, v4
    """)
    if hmap == "xcd":
        a("s_and_b32 s4, s2, 7"); a("s_lshr_b32 s5, s2, 3")
    else:
        a("s_lshr_b32 s4, s2, 5"); a("s_and_b32 s5, s2, 31")
    a("""
    v_lshlrev_b32 v3, 4, v1
    v_bfe_u32 v4, v1, 2, 2
    v_lshlrev_b32 v2, 8, v4
    v_lshrrev_b32 v4, 4, v1
    v_lshl_add_u32 v2, v4, 6, v2
    v_and_b32 v5, 3, v1
    v_lshl_add_u32 v2, v5, 4, v2
    """)
    a("""
    v_lshrrev_b32 v56, 3, v0
    v_and_b32 v58, 7, v0
    v_lshlrev_b32 v58, 4, v58
    v_lshl_add_u32 v57, v56, 13, v58
    v_mul_u32_u24 v60, 3584, v56
    v_add_u32 v60, v60, v58
    v_add_u32 v58, 0x80000, v57
    s_and_b32 s69, s5, 3
    s_lshl_b32 s68, s69, 20
    s_lshl_b32 s7, s4, 10
    s_add_u32 s68, s68, s7
    s_lshr_b32 s7, s5, 2
    s_lshl_b32 s7, s7, 7
    s_add_u32 s68, s68, s7
    s_lshl_b32 s70, s4, 23
    s_lshl_b32 s7, s5, 18
    s_add_u32 s70, s70, s7
    s_lshl_b32 s7, s3, 15
    s_add_u32 s70, s70, s7
    """)
    a("s_waitcnt lgkmcnt(0)")
    def srd(d, b, size):
        a(f"s_mov_b32 s{d}, s{b}"); a(f"s_and_b32 s{d+1}, s{b+1}, 0xffff"); a(f"s_mov_b32 s{d+2}, {size}"); a(f"s_mov_b32 s{d+3}, 0x20000")
    srd(8, 36, 1024)
    vm("buffer_load_dwordx4 v[52:55], v3, s[8:11], 0 offen", "x")
    srd(20, 42, 4 << 20)
    if "wq" in skip: a(f"s_mov_b32 s68, {OOB}")
    vm(f"buffer_load_dwordx4 v[20:23], v57, s[20:23], s68 offen {wflags}", "wq0")
    vm(f"buffer_load_dwordx4 v[24:27], v58, s[20:23], s68 offen {wflags}", "wq1")
    srd(12, 38, 64 << 20)
    srd(16, 40, 64 << 20)
    srd(24, 44, 4 << 20)
    a("s_load_dword s6, s[58:59], 0")
    a("s_mul_i32 s96, s4, 7"); a("s_lshr_b32 s7, s5, 2"); a("s_add_u32 s96, s96, s7")
    a("s_cmp_ge_u32 s96, 28")
    a("s_cselect_b32 s28, s50, s48"); a("s_cselect_b32 s29, s51, s49"); a("s_cselect_b32 s7, 28, 0"); a("s_and_b32 s29, s29, 0xffff")
    a(f"s_mov_b32 s30, {512*1792*2}"); a("s_mov_b32 s31, 0x20000")
    a("s_sub_u32 s97, s96, s7"); a("s_lshl_b32 s97, s97, 7")
    a(f"s_mul_i32 s7, s69, {128*3584}"); a("s_add_u32 s97, s97, s7")
    a("s_lshl_b32 s96, s96, 10"); a("s_lshl_b32 s7, s69, 8"); a("s_add_u32 s96, s96, s7"); a(f"s_add_u32 s96, s96, {WS_G}")
    a("s_cmp_lt_u32 s5, 28")
    a(f"s_cselect_b32 s97, s97, {OOB}"); a(f"s_cselect_b32 s96, s96, {OOB}")
    for g in range(8):
        a(f"s_add_u32 s{40+g}, s70, {g*4096}")
    for n in range(W0):
        ld_tile(n)
    srd(32, 52, 512 * 1792 * 2)
    srd(60, 54, 1024)
    srd(64, 58, WS_SIZE)
    a("v_mov_b32 v4, 0"); a("v_mov_b32 v5, 0"); a("v_mov_b32 v6, 0"); a("v_mov_b32 v7, 0"); a(f"v_mov_b32 v8, {L_CNT}")
    a("ds_write_b128 v8, v[4:7]")
    a("""
    v_and_b32 v63, 3, v1
    v_mov_b32 v9, 0x0c0c0c0c
    v_mov_b32 v10, 0x0c0c0c0c
    v_mov_b32 v11, 0x0c0c0c0c
    v_mov_b32 v59, 0x0c0c0100
    v_mov_b32 v12, 0x01000c0c
    v_mov_b32 v61, 0x0c0c0302
    v_mov_b32 v62, 0x03020c0c
    s_waitcnt lgkmcnt(0)
    s_barrier
    v_mov_b32 v8, 0x0c0c0c0c
    v_cmp_eq_u32 vcc, 0, v63
    v_cndmask_b32 v8, v8, v59, vcc
    v_cndmask_b32 v10, v10, v61, vcc
    v_cmp_eq_u32 vcc, 1, v63
    v_cndmask_b32 v8, v8, v12, vcc
    v_cndmask_b32 v10, v10, v62, vcc
    v_cmp_eq_u32 vcc, 2, v63
    v_cndmask_b32 v9, v9, v59, vcc
    v_cndmask_b32 v11, v11, v61, vcc
    v_cmp_eq_u32 vcc, 3, v63
    v_cndmask_b32 v9, v9, v12, vcc
    v_cndmask_b32 v11, v11, v62, vcc
    """)
    a(f"s_add_u32 s6, s6, {TAGSTEP}")
    a("v_mov_b32 v62, 0x05040100"); a("v_mov_b32 v63, 0x07060302")
    T = slot(40)
    X = list(range(T, T + 8))
    wait_vm("x")
    for i in range(4):
        a(f"v_lshlrev_b32 v{X[2*i]}, 16, v{52+i}")
        a(f"v_and_b32 v{X[2*i+1]}, 0xffff0000, v{52+i}")
    S, S2, TM, MEAN = T + 8, T + 9, T + 10, T + 11
    F4 = ("quad_perm:[1,0,3,2]", "quad_perm:[2,3,0,1]", "row_ror:4", "row_ror:8")
    a(f"v_add_f32 v{S}, v{X[0]}, v{X[1]}")
    a(f"v_add_f32 v{S2}, v{X[2]}, v{X[3]}")
    a(f"v_add_f32 v{TM}, v{X[4]}, v{X[5]}")
    a(f"v_add_f32 v{MEAN}, v{X[6]}, v{X[7]}")
    a(f"v_add_f32 v{S}, v{S}, v{S2}")
    a(f"v_add_f32 v{TM}, v{TM}, v{MEAN}")
    a(f"v_add_f32 v{S}, v{S}, v{TM}")
    allred([S], [TM], first=F4)
    a(f"v_mul_f32 v{MEAN}, 0x3b000000, v{S}")
    D = list(range(T + 12, T + 20))
    for i in range(8):
        a(f"v_sub_f32 v{D[i]}, v{X[i]}, v{MEAN}")
    a(f"v_mul_f32 v{S}, v{D[0]}, v{D[0]}")
    a(f"v_mul_f32 v{S2}, v{D[1]}, v{D[1]}")
    for i in range(2, 8, 2):
        a(f"v_fmac_f32 v{S}, v{D[i]}, v{D[i]}")
        a(f"v_fmac_f32 v{S2}, v{D[i+1]}, v{D[i+1]}")
    a(f"v_add_f32 v{S}, v{S}, v{S2}")
    allred([S], [TM], first=F4)
    a(f"v_mul_f32 v{S}, 0x3b000000, v{S}")
    bf16r(S, S)
    a(f"v_add_f32 v{S}, 0x3727c5ac, v{S}")
    bf16r(S, S)
    a(f"v_sqrt_f32 v{S}, v{S}")
    bf16r(S, S)
    bf16r(MEAN, MEAN)
    a(f"v_rcp_f32 v{S2}, v{S}")
    for i in range(8):
        a(f"v_sub_f32 v{D[i]}, v{X[i]}, v{MEAN}")
    for i in range(0, 8, 2):
        a(f"v_cvt_pk_bf16_f32 v{TM}, v{D[i]}, v{D[i+1]}")
        a(f"v_lshlrev_b32 v{D[i]}, 16, v{TM}")
        a(f"v_and_b32 v{D[i+1]}, 0xffff0000, v{TM}")
    for i in range(8):
        a(f"v_mul_f32 v{X[i]}, v{D[i]}, v{S2}")
        a(f"v_fma_f32 v{D[i]}, -v{X[i]}, v{S}, v{D[i]}")
        a(f"v_fmac_f32 v{X[i]}, v{D[i]}, v{S2}")
    for i in range(0, 8, 2):
        a(f"v_cvt_pk_bf16_f32 v{TM}, v{X[i]}, v{X[i+1]}")
        a(f"v_lshlrev_b32 v{X[i]}, 16, v{TM}")
        a(f"v_and_b32 v{X[i+1]}, 0xffff0000, v{TM}")
    a(f"v_lshlrev_b32 v{TM}, 5, v1")
    a(f"ds_write_b128 v{TM}, v[{X[0]}:{X[3]}] offset:{L_XN}")
    a(f"ds_write_b128 v{TM}, v[{X[4]}:{X[7]}] offset:{L_XN+16}")
    a("v_lshlrev_b32 v56, 2, v56")
    a("s_lshl_b32 s7, s69, 9"); a("v_add_u32 v56, s7, v56")
    XA, XB = T + 20, T + 21
    XP, QA = 61, 59
    a(f"ds_read_b32 v{XA}, v56 offset:{L_XN}")
    a(f"ds_read_b32 v{XB}, v56 offset:{L_XN+256}")
    a(f"v_bfe_u32 v{TM}, v1, 4, 1"); a(f"v_lshrrev_b32 v{S}, 5, v1")
    a(f"v_lshl_add_u32 v{TM}, v{TM}, 1, v{S}")
    a(f"v_and_b32 v{S}, 7, v1"); a(f"v_lshl_add_u32 v{TM}, v{S}, 3, v{TM}")
    a(f"v_lshlrev_b32 v{QA}, 2, v{TM}")
    a("s_lshl_b32 s7, s3, 8"); a(f"v_add_u32 v{QA}, s7, v{QA}")
    def gemv(acc, w0, w1, xp, tmp):
        for i in range(4):
            a(f"v_perm_b32 v{tmp+2*i}, v{w1+i}, v{w0+i}, v62")
            a(f"v_perm_b32 v{tmp+2*i+1}, v{w1+i}, v{w0+i}, v63")
        for i in range(8):
            a(f"v_dot2_f32_bf16 v{acc+i}, v{tmp+i}, v{xp}, 0")
    def pack(g, v0, v1, v2, v3, sel):
        a(f"v_perm_b32 v{g}, v{v0}, v{v3}, v{sel}")
        a(f"v_perm_b32 v{g+1}, v{v1}, v{v3}, v{sel+1}")
        a(f"v_perm_b32 v{g+2}, v{v2}, v{v3}, v{sel+2}")
        a(f"v_mov_b32 v{g+3}, s6")
    def pack_sel(sel):
        a(f"v_mov_b32 v{sel}, 0x07060501"); a(f"v_mov_b32 v{sel+1}, 0x07060502"); a(f"v_mov_b32 v{sel+2}, 0x07060503")
    def unpack(g, sel):
        a(f"v_perm_b32 v{g+3}, v{g+2}, v{g+1}, v{sel}")
        a(f"v_perm_b32 v{g+3}, v{g+3}, v{g}, v{sel+1}")
    def unpack_sel(sel):
        a(f"v_mov_b32 v{sel}, 0x04000c0c"); a(f"v_mov_b32 v{sel+1}, 0x0706000c")
    def task(lpart, cnt, sdst, mid=None):
        sk = newlabel("L_tk")
        gemv(36, 20, 24, XP, 44)
        r = swapred(list(range(36, 44)), "v_permlane32_swap_b32")
        r = swapred(r, "v_permlane16_swap_b32")
        allred(r, [], first=("row_ror:8",), rows=False, full=False)
        a(f"ds_write_b32 v{QA}, v{r[0]} offset:{lpart}")
        a(f"ds_write_b32 v{QA}, v{r[1]} offset:{lpart+16}")
        lds_inc(cnt, 44, 45, rtn=46)
        if mid: mid()
        a("s_waitcnt lgkmcnt(0)")
        a("v_readfirstlane_b32 s7, v46")
        a("s_cmp_eq_u32 s7, 7")
        branch("s_cbranch_scc0", sk)
        a("v_and_b32 v44, 15, v1"); a("v_lshlrev_b32 v44, 4, v44")
        a("v_lshrrev_b32 v45, 4, v1"); a("v_lshl_add_u32 v45, v45, 9, v44")
        a(f"ds_read_b128 v[36:39], v45 offset:{lpart}")
        a(f"ds_read_b128 v[40:43], v45 offset:{lpart+256}")
        pack_sel(52)
        a("s_waitcnt lgkmcnt(0)")
        for i in range(4): a(f"v_add_f32 v{36+i}, v{36+i}, v{40+i}")
        allred([36, 37, 38, 39], [40, 41, 42, 43])
        pack(48, 36, 37, 38, 39, 52)
        a("s_mov_b64 exec, 0xffff")
        a(f"buffer_store_dwordx4 v[48:51], v44, s[64:67], {sdst} offen sc1")
        a("s_mov_b64 exec, -1")
        label(sk)
    a("s_lshl_b32 s71, s4, 13"); a(f"s_add_u32 s71, s71, {WS_Q}"); a("s_lshl_b32 s7, s5, 8"); a("s_add_u32 s68, s71, s7")
    a("s_lshr_b32 s7, s3, 1"); a("s_lshl_b32 s7, s7, 8"); a("s_add_u32 s70, s71, s7"); a("s_and_b32 s7, s3, 1"); a("s_lshl_b32 s7, s7, 4"); a("s_add_u32 s70, s70, s7")
    a("s_mov_b32 s71, 1")
    a("v_lshrrev_b32 v32, 7, v2"); a("v_lshlrev_b32 v32, 10, v32"); a("v_and_b32 v33, 127, v2"); a("v_lshl_add_u32 v32, v33, 1, v32")
    wait_vm("wq1", "lgkmcnt(0)")
    a(f"v_perm_b32 v{XP}, v{XB}, v{XA}, v63")
    n0 = W0 + 1
    task(L_QP, L_CNT, "s68", mid=lambda: ld_tile(W0))
    stamp(1)

    def c_f1_issue():
        a(f"v_add_u32 v58, {64*3584}, v60")
        if "gu" in skip: a(f"s_mov_b32 s97, {OOB}")
        vm(f"buffer_load_dwordx4 v[20:23], v60, s[28:31], s97 offen {wflags}", "gu0")
        vm(f"buffer_load_dwordx4 v[24:27], v58, s[28:31], s97 offen {wflags}", "gu1")
    def c_f1():
        wait_vm("gu1")
        task(L_GP, L_CNT + 12, "s96")
    att = [0]
    def c_poll_issue():
        vm("buffer_load_dwordx4 v[28:31], v32, s[64:67], s70 offen sc1", f"qp{att[0]}"); att[0] += 1
    def poll_commit():
        unpack_sel(44)
        unpack(28, 44)
        a("s_lshl_b32 s7, s3, 10"); a("v_add_u32 v46, s7, v3")
        a(f"ds_write_b128 v46, v[28:31] offset:{L_QG}")
        lds_inc(L_CNT + 4, 44, 45)
        a("s_mov_b32 s71, 0"); a(f"s_mov_b32 s70, {OOB}")
        stamp(2)
    def c_poll_mid():
        sk = newlabel("L_pm")
        wait_vm(f"qp{att[0]-1}")
        a("v_cmp_ne_u32 vcc, s6, v31")
        a("s_cmp_eq_u32 s71, 0"); branch("s_cbranch_scc1", sk)
        branch("s_cbranch_vccnz", sk)
        poll_commit()
        label(sk)
        c_poll_issue()
    def c_poll_last():
        sk, lo, ok = newlabel("L_pl"), newlabel("L_pll"), newlabel("L_plk")
        wait_vm(f"qp{att[0]-1}")
        a("s_cmp_eq_u32 s71, 0"); branch("s_cbranch_scc1", sk)
        a(f"s_mov_b32 s49, {spin}")
        label(lo)
        a("v_cmp_ne_u32 vcc, s6, v31")
        a("s_sub_u32 s49, s49, 1"); a(f"s_cbranch_scc1 {ok}")
        branch("s_cbranch_vccz", ok)
        a("s_sleep 2")
        a("buffer_load_dwordx4 v[28:31], v32, s[64:67], s70 offen sc1")
        a("s_waitcnt vmcnt(0)")
        a(f"s_branch {lo}")
        label(ok)
        poll_commit()
        label(sk)
        lds_spin(L_CNT + 4, 8, 45, 46)
        for v in range(8):
            a(f"ds_read_b128 v[{20+4*v}:{23+4*v}], v3 offset:{L_QG + 1024*v}")
        a(f"v_mov_b32 v{MX}, 0xff800000")
        a(f"s_mov_b32 s69, {SCALE}")
        a("s_waitcnt lgkmcnt(0)")
        for i in range(8):
            a(f"v_add_f32 v{20+i}, v{20+i}, v{28+i}"); a(f"v_add_f32 v{36+i}, v{36+i}, v{44+i}")
        for i in range(8):
            a(f"v_add_f32 v{20+i}, v{20+i}, v{36+i}")
        for i in range(4):
            a(f"v_cvt_pk_bf16_f32 v{4+i}, v{20+2*i}, v{21+2*i}")
        stamp(3)
    FZ = slot(16)
    def c_f2_issue():
        a(f"v_and_b32 v{FZ+8}, 3, v1"); a(f"v_lshlrev_b32 v{FZ+8}, 8, v{FZ+8}")
        a(f"v_bfe_u32 v{FZ+9}, v1, 2, 1"); a(f"v_lshl_add_u32 v{FZ+8}, v{FZ+9}, 4, v{FZ+8}")
        a(f"v_bfe_u32 v{FZ+9}, v1, 3, 1"); a(f"v_mul_u32_u24 v{FZ+9}, {28*1024}, v{FZ+9}"); a(f"v_add_u32 v{FZ+8}, v{FZ+8}, v{FZ+9}")
        a("s_mul_i32 s96, s4, 28"); a("s_add_u32 s96, s96, s5")
        a("s_lshl_b32 s97, s96, 3"); a("s_add_u32 s97, s97, s3"); a("s_lshl_b32 s97, s97, 10")
        a("s_lshr_b32 s7, s96, 3"); a("s_lshl_b32 s7, s7, 10"); a("s_and_b32 s96, s96, 7"); a("s_lshl_b32 s96, s96, 5")
        a("s_add_u32 s96, s96, s7"); a(f"s_add_u32 s96, s96, {WS_G}")
        a("s_cmp_lt_u32 s5, 28")
        a(f"s_cselect_b32 s96, s96, {OOB}"); a(f"s_cselect_b32 s97, s97, {OOB}"); a("s_cselect_b32 s98, s6, 0")
        if "wd" in skip: a(f"s_mov_b32 s97, {OOB}")
        vm(f"buffer_load_dwordx4 v[{FZ}:{FZ+3}], v{FZ+8}, s[64:67], s96 offen sc1", "fg")
        vm(f"buffer_load_dwordx4 v[{FZ+4}:{FZ+7}], v3, s[32:35], s97 offen {wflags}", "wd")
    def c_f2():
        lo, ok = newlabel("L_fl"), newlabel("L_fk")
        wait_vm("wd")
        a(f"s_mov_b32 s49, {spin}")
        label(lo)
        a(f"v_cmp_ne_u32 vcc, s98, v{FZ+3}")
        a("s_sub_u32 s49, s49, 1"); a(f"s_cbranch_scc1 {ok}")
        branch("s_cbranch_vccz", ok)
        a("s_sleep 2")
        a(f"buffer_load_dwordx4 v[{FZ}:{FZ+3}], v{FZ+8}, s[64:67], s96 offen sc1")
        a("s_waitcnt vmcnt(0)")
        a(f"s_branch {lo}")
        label(ok)
        H = FZ + 8
        unpack_sel(H); unpack(FZ, H)
        allred([FZ, FZ + 1, FZ + 2, FZ + 3], [], first=F4[:2], rows=False, full=False)
        a(f"v_and_b32 v{H}, 3, v1")
        a(f"v_cmp_eq_u32 vcc, 1, v{H}"); a(f"v_cndmask_b32 v{FZ}, v{FZ}, v{FZ+1}, vcc")
        a(f"v_cmp_eq_u32 vcc, 2, v{H}"); a(f"v_cndmask_b32 v{FZ}, v{FZ}, v{FZ+2}, vcc")
        a(f"v_cmp_eq_u32 vcc, 3, v{H}"); a(f"v_cndmask_b32 v{FZ}, v{FZ}, v{FZ+3}, vcc")
        g, u, y, c = FZ, FZ + 1, FZ + 2, FZ + 3
        bf16r(g, g)
        a(f"v_mov_b32 v{u}, v{g} row_ror:8 {DPP}")
        a(f"v_mul_f32 v{y}, v{g}, v{g}")
        a(f"v_mul_f32 v{y}, v{y}, v{g}")
        a(f"v_mov_b32 v{c}, 0x3d372713")
        a(f"v_fma_f32 v{y}, v{y}, v{c}, v{g}")
        a(f"v_mul_f32 v{y}, 0xc0135761, v{y}")
        a(f"v_exp_f32 v{y}, v{y}")
        a(f"v_add_f32 v{y}, 1.0, v{y}")
        a(f"v_rcp_f32 v{y}, v{y}")
        a(f"v_mul_f32 v{y}, v{y}, v{g}")
        bf16r(y, y)
        a(f"v_mul_f32 v{y}, v{y}, v{u}")
        bf16r(y, y)
        a(f"v_readlane_b32 s7, v{y}, s3")
        for i in range(4):
            a(f"v_lshlrev_b32 v{H+2*i}, 16, v{FZ+4+i}"); a(f"v_and_b32 v{H+2*i+1}, 0xffff0000, v{FZ+4+i}")
        for i in range(8): a(f"v_mul_f32 v{H+i}, s7, v{H+i}")
        a(f"v_lshlrev_b32 v{FZ}, 5, v0")
        a(f"ds_write_b128 v{FZ}, v[{H}:{H+3}] offset:{L_F}")
        a(f"ds_write_b128 v{FZ}, v[{H+4}:{H+7}] offset:{L_F+16}")
    OZ = slot(20)
    def c_wo_issue():
        a("s_lshl_b32 s7, s4, 19"); a("s_lshl_b32 s48, s5, 14"); a("s_add_u32 s7, s7, s48"); a("s_lshl_b32 s48, s3, 11"); a("s_add_u32 s7, s7, s48")
        if "wo" in skip: a(f"s_mov_b32 s7, {OOB}")
        vm(f"buffer_load_dwordx4 v[{OZ}:{OZ+3}], v3, s[24:27], s7 offen {wflags}", "wo0")
        vm(f"buffer_load_dwordx4 v[{OZ+4}:{OZ+7}], v3, s[24:27], s7 offen offset:1024 {wflags}", "wo1")
    def c_wo():
        wait_vm("wo1")
        for d in range(4):
            a(f"v_perm_b32 v{OZ+8+2*d}, v{OZ+4+d}, v{OZ+d}, v62")
            a(f"v_perm_b32 v{OZ+9+2*d}, v{OZ+4+d}, v{OZ+d}, v63")
        a(f"v_lshlrev_b32 v{OZ}, 5, v0")
        a(f"ds_write_b128 v{OZ}, v[{OZ+8}:{OZ+11}] offset:{L_WO}")
        a(f"ds_write_b128 v{OZ}, v[{OZ+12}:{OZ+15}] offset:{L_WO+16}")
    def c_addr():
        a("v_lshrrev_b32 v61, 3, v0"); a("v_lshlrev_b32 v61, 12, v61"); a("v_and_b32 v58, 7, v0"); a("v_lshl_add_u32 v61, v58, 4, v61")
        a("s_lshl_b32 s71, s4, 17"); a(f"s_add_u32 s71, s71, {WS_IN1}"); a("s_lshl_b32 s68, s5, 7"); a("s_add_u32 s68, s68, s71")
        a("s_lshl_b32 s48, s5, 12"); a("s_add_u32 s71, s71, s48")
        a("s_lshl_b32 s50, s2, 14"); a(f"s_add_u32 s50, s50, {WS_IN2}")
        a("s_cmp_lt_u32 s2, 64"); a(f"s_cselect_b32 s50, s50, {OOB}")
        if warm:
            WZ = slot(24)
            a("s_lshl_b32 s7, s3, 10"); a("s_add_u32 s7, s7, s71"); a("s_sub_u32 s7, s7, 4096")
            a("s_cmp_lt_u32 s3, 4"); a("s_cselect_b32 s7, s68, s7"); a("s_cselect_b64 vcc, -1, 0")
            a(f"v_cndmask_b32 v{WZ+4}, v3, v61, vcc")
            vm(f"buffer_load_dwordx4 v[{WZ}:{WZ+3}], v{WZ+4}, s[64:67], s7 offen sc1", "warm0")
            a("s_lshl_b32 s7, s3, 11"); a("s_add_u32 s7, s7, s50")
            vm(f"buffer_load_dwordx4 v[{WZ}:{WZ+3}], v3, s[64:67], s7 offen sc1", "warm1")
            vm(f"buffer_load_dwordx4 v[{WZ}:{WZ+3}], v3, s[64:67], s7 offen offset:1024 sc1", "warm2")
    MX = 52
    def qk4(i):
        def f():
            for k in range(i, i + 4):
                wait_vm(tname(k))
                d = 36 + 4 * (k % 4)
                a(f"v_mfma_f32_16x16x32_bf16 v[{d}:{d+3}], v[{slot(k)}:{slot(k)+3}], v[4:7], 0")
            for p in (i, i + 2):
                for k, t in ((p, 54), (p + 1, 55)):
                    d = 36 + 4 * (k % 4)
                    a(f"v_mov_b32 v{t}, v{d} quad_perm:[0,0,0,0] {DPP}")
                    a(f"v_add_f32 v{t}, v{d+1}, v{t} quad_perm:[1,1,1,1] {DPP}")
                    a(f"v_add_f32 v{t}, v{d+2}, v{t} quad_perm:[2,2,2,2] {DPP}")
                    a(f"v_add_f32 v{t}, v{d+3}, v{t} quad_perm:[3,3,3,3] {DPP}")
                a("v_cvt_pk_bf16_f32 v56, v54, v55")
                a("v_lshlrev_b32 v54, 16, v56")
                a("v_and_b32 v55, 0xffff0000, v56")
                a("v_mul_f32 v54, s69, v54")
                a("v_mul_f32 v55, s69, v55")
                a(f"v_cvt_pk_bf16_f32 v{20 + p//2}, v54, v55")
                a(f"v_max3_f32 v{MX}, v{MX}, v54, v55")
        return f
    LS = 57
    def c_max():
        stamp(4)
        allred([MX], [53], op="v_max_f32")
        bf16r(MX, MX)
        a(f"s_mov_b32 s69, {LOG2E}")
        a(f"v_mul_f32 v53, s69, v{MX}")
        a(f"v_mov_b32 v{LS}, 0"); a("v_mov_b32 v58, 0")
    def c_exp(lo, hi):
        def f():
            for i in range(lo, hi):
                x, y = (36, 37) if i % 2 == 0 else (38, 39)
                a(f"v_lshlrev_b32 v{x}, 16, v{20+i}")
                a(f"v_and_b32 v{y}, 0xffff0000, v{20+i}")
                a(f"v_fma_f32 v{x}, v{x}, s69, -v53")
                a(f"v_fma_f32 v{y}, v{y}, s69, -v53")
                a(f"v_exp_f32 v{x}, v{x}")
                a(f"v_exp_f32 v{y}, v{y}")
                a(f"v_add_f32 v{LS}, v{LS}, v{x}")
                a(f"v_add_f32 v58, v58, v{y}")
                a(f"v_cvt_pk_bf16_f32 v{20+i}, v{x}, v{y}")
        return f
    def c_ml():
        a(f"v_add_f32 v{LS}, v{LS}, v58")
        allred([LS], [58])
        a("v_bfe_u32 v54, v1, 2, 2")
        a("v_lshlrev_b32 v54, 5, v54")
        a("s_lshl_b32 s7, s3, 2")
        a("v_add_u32 v55, s7, v54")
        a(f"ds_write_b32 v55, v{MX} offset:{L_MX}")
        a(f"ds_write_b32 v55, v{LS} offset:{L_LP}")
        lds_inc(L_CNT + 8, 54, 55)
        for i in range(8): a(f"v_mov_b32 v{12+i}, 0")
        stamp(5)
    def pv(i):
        def f():
            sl = slot((32 + i) % 48)
            x = 36 + 2 * (i % 4)
            s0, s1 = (8, 9) if i % 2 == 0 else (10, 11)
            a(f"v_perm_b32 v{x}, v{20+i//2}, v{20+i//2}, v{s0}")
            a(f"v_perm_b32 v{x+1}, v{20+i//2}, v{20+i//2}, v{s1}")
            wait_vm(tname(32 + i))
            a(f"v_mfma_f32_16x16x16_bf16 v[12:15], v[{x}:{x+1}], v[{sl}:{sl+1}], v[12:15]")
            a(f"v_mfma_f32_16x16x16_bf16 v[16:19], v[{x}:{x+1}], v[{sl+2}:{sl+3}], v[16:19]")
        return f
    FS, XML = 59, 60
    def c_scale():
        Z = slot(28)
        lds_spin(L_CNT + 8, 8, Z, Z + 1)
        a(f"v_lshrrev_b32 v{Z}, 4, v1"); a(f"v_lshlrev_b32 v{Z}, 5, v{Z}")
        a("s_lshl_b32 s7, s3, 2"); a(f"v_add_u32 v{Z+1}, s7, v{Z}")
        a(f"ds_read_b128 v[44:47], v{Z} offset:{L_MX}")
        a(f"ds_read_b128 v[48:51], v{Z} offset:{L_MX+16}")
        a(f"ds_read_b32 v{Z+2}, v{Z+1} offset:{L_MX}")
        a("s_and_b32 s7, s3, 3"); a("s_lshl_b32 s7, s7, 5"); a(f"v_mov_b32 v{Z+3}, s7")
        a(f"ds_read_b128 v[{Z+4}:{Z+7}], v{Z+3} offset:{L_MX}")
        a(f"ds_read_b128 v[{Z+8}:{Z+11}], v{Z+3} offset:{L_MX+16}")
        a(f"ds_read_b128 v[{Z-8}:{Z-5}], v{Z+3} offset:{L_LP}")
        a(f"ds_read_b128 v[{Z-4}:{Z-1}], v{Z+3} offset:{L_LP+16}")
        a("s_waitcnt lgkmcnt(4)")
        a("v_max3_f32 v44, v44, v45, v46"); a("v_max3_f32 v48, v48, v49, v50")
        a("v_max3_f32 v44, v44, v47, v51"); a("v_max_f32 v44, v44, v48")
        a(f"v_sub_f32 v{FS}, v{Z+2}, v44"); a(f"v_mul_f32 v{FS}, s69, v{FS}"); a(f"v_exp_f32 v{FS}, v{FS}")
        a("s_waitcnt lgkmcnt(0)")
        M = 45
        a(f"v_max3_f32 v{M}, v{Z+4}, v{Z+5}, v{Z+6}"); a(f"v_max3_f32 v46, v{Z+8}, v{Z+9}, v{Z+10}")
        a(f"v_max3_f32 v{M}, v{M}, v{Z+7}, v{Z+11}"); a(f"v_max_f32 v{M}, v{M}, v46")
        for i in range(8):
            a(f"v_sub_f32 v{Z+4+i}, v{Z+4+i}, v{M}")
        for i in range(8):
            a(f"v_mul_f32 v{Z+4+i}, s69, v{Z+4+i}")
        for i in range(8):
            a(f"v_exp_f32 v{Z+4+i}, v{Z+4+i}")
        a(f"v_mul_f32 v46, v{Z+4}, v{Z-8}"); a(f"v_mul_f32 v47, v{Z+5}, v{Z-7}")
        for i in range(2, 8, 2):
            a(f"v_fmac_f32 v46, v{Z+4+i}, v{Z-8+i}"); a(f"v_fmac_f32 v47, v{Z+5+i}, v{Z-7+i}")
        a("v_add_f32 v46, v46, v47")
        a("v_and_b32 v47, 1, v1"); a("v_cmp_eq_u32 vcc, 0, v47")
        a(f"v_cndmask_b32 v{XML}, v46, v{M}, vcc")

    NS = 64 + W
    chunks = {n: [] for n in range(NS + 1)}
    chunks[fstep].append(c_f1_issue)
    chunks[fstep + W + 1].append(c_f1)
    assert poll1 > fstep + W + 1 or True
    chunks[poll1].append(c_poll_issue)
    p = poll1 + W + 1
    while p + 2 < qstep:
        chunks[p].append(c_poll_mid); p += W + 1
    chunks[qstep].append(c_poll_last)
    assert fstep + W + 1 < qstep
    for j in range(8):
        chunks[qstep + j].append(qk4(4 * j))
    e = qstep + 8
    chunks[e] += [c_max, c_exp(0, 6)]
    chunks[e + 1] += [c_exp(6, 16), c_ml]
    assert gstep >= e and wostep >= e and warmstep >= e
    nv = 0
    for n in range(e + 2, NS):
        k = 0
        while k < 3 and nv < 32 and 32 + nv <= n - W:
            chunks[n].append(pv(nv)); nv += 1; k += 1
    assert nv == 32
    chunks[gstep].append(c_f2_issue)
    chunks[min(gstep + W + 1, NS - 3)].append(c_f2)
    chunks[wostep].append(c_wo_issue)
    chunks[min(wostep + W + 1, NS - 3)].append(c_wo)
    chunks[warmstep].append(c_addr)
    chunks[mlstep].append(c_scale)
    for n in range(n0, NS):
        if 48 <= n < 64:
            assert (n - 48) // 4 + qstep < n
        if n < 64:
            if n >= W: wait_vm(tname(n - W))
            ld_tile(n)
        for f in chunks[n]: f()
    for i in range(8): a(f"v_mul_f32 v{12+i}, v{12+i}, v{FS}")
    a("v_lshlrev_b32 v36, 5, v0")
    a(f"ds_write_b128 v36, v[12:15] offset:{L_OP}")
    a(f"ds_write_b128 v36, v[16:19] offset:{L_OP+16}")
    a("s_cmp_ge_u32 s3, 4")
    a("s_waitcnt lgkmcnt(0)")
    a("s_barrier")
    stamp(6)
    branch("s_cbranch_scc1", "L_roleC")
    a("v_lshlrev_b32 v36, 3, v0")
    for v in range(8):
        a(f"ds_read_b64 v[{20+2*v}:{21+2*v}], v36 offset:{L_OP + v*2048}")
    a(f"v_mov_b32 v42, v{XML}"); a("v_mov_b32 v43, s6")
    a("s_waitcnt lgkmcnt(4)")
    a("v_pk_add_f32 v[20:21], v[20:21], v[22:23]"); a("v_pk_add_f32 v[24:25], v[24:25], v[26:27]")
    a("s_waitcnt lgkmcnt(0)")
    a("v_pk_add_f32 v[28:29], v[28:29], v[30:31]"); a("v_pk_add_f32 v[32:33], v[32:33], v[34:35]")
    a("v_pk_add_f32 v[20:21], v[20:21], v[24:25]")
    a("v_pk_add_f32 v[28:29], v[28:29], v[32:33]")
    a("v_pk_add_f32 v[40:41], v[20:21], v[28:29]")
    a("buffer_store_dwordx4 v[40:43], v61, s[64:67], s68 offen sc1")
    a("s_cmp_eq_u32 s3, 0")
    branch("s_cbranch_scc0", "L_end")
    GI = slot(0)
    def p1_issue():
        for k in range(4):
            a(f"buffer_load_dwordx4 v[{GI+4*k}:{GI+4*k+3}], v3, s[64:67], s71 offen offset:{k*1024} sc1")
    p1_issue()
    a("v_lshrrev_b32 v53, 2, v1"); a("v_lshlrev_b32 v53, 16, v53"); a("v_and_b32 v58, 3, v1"); a("v_lshl_add_u32 v53, v58, 4, v53")
    a("s_lshl_b32 s50, s2, 6"); a(f"s_add_u32 s50, s50, {WS_IN2}")
    WP = slot(32)
    FB = slot(16)
    a("v_lshlrev_b32 v36, 5, v1")
    for v in range(8):
        a(f"ds_read_b128 v[{FB+8*v}:{FB+8*v+3}], v36 offset:{L_F + 2048*v}")
        a(f"ds_read_b128 v[{FB+8*v+4}:{FB+8*v+7}], v36 offset:{L_F + 2048*v + 16}")
        if v == 3: a("s_waitcnt lgkmcnt(4)")
    a("s_waitcnt lgkmcnt(0)")
    for j in range(8):
        a(f"ds_read_b128 v[{WP+8*j}:{WP+8*j+3}], v36 offset:{L_WO + 2048*j}")
        a(f"ds_read_b128 v[{WP+8*j+4}:{WP+8*j+7}], v36 offset:{L_WO + 2048*j + 16}")
        if j == 3: a("s_waitcnt lgkmcnt(4)")
    for st_, pairs in ((8, (0, 2, 4, 6)), (16, (0, 4)), (32, (0,))):
        for v in pairs:
            for i in range(0, 8, 2):
                d = f"v[{FB+8*v+i}:{FB+8*v+i+1}]" if st_ < 32 else f"v[{44+i}:{45+i}]"
                a(f"v_pk_add_f32 {d}, v[{FB+8*v+i}:{FB+8*v+i+1}], v[{FB+8*v+st_+i}:{FB+8*v+st_+i+1}]")
    pack_sel(54)
    a(f"s_mov_b32 s49, {spin}")
    label("L_p1")
    a("s_waitcnt vmcnt(0)")
    a(f"v_xor_b32 v38, s6, v{GI+3}"); a(f"v_xor_b32 v39, s6, v{GI+7}"); a("v_or_b32 v38, v38, v39")
    a(f"v_xor_b32 v39, s6, v{GI+11}"); a(f"v_xor_b32 v37, s6, v{GI+15}"); a("v_or3_b32 v38, v38, v39, v37")
    a("v_cmp_ne_u32 vcc, 0, v38")
    a("s_sub_u32 s49, s49, 1"); a("s_cbranch_scc1 L_p1d")
    a("s_and_b64 exec, exec, vcc")
    branch("s_cbranch_execz", "L_p1d")
    a("s_sleep 1")
    p1_issue()
    a("s_branch L_p1")
    label("L_p1d")
    a("s_mov_b64 exec, -1")
    stamp(7)
    a("s_barrier")
    for k in range(4):
        a(f"v_mov_b32 v{20+k}, v{GI+4*k+2} quad_perm:[0,0,2,2] {DPP}")
        a(f"v_mov_b32 v{24+k}, v{GI+4*k+2} quad_perm:[1,1,3,3] {DPP}")
    a("v_max3_f32 v28, v20, v21, v22"); a("v_max_f32 v28, v28, v23")
    allred([28], [29], op="v_max_f32", first=("row_ror:8",))
    a("v_mul_f32 v28, s69, v28")
    for k in range(4): a(f"v_fma_f32 v{20+k}, v{20+k}, s69, -v28")
    for k in range(4): a(f"v_exp_f32 v{20+k}, v{20+k}")
    a(f"v_mul_f32 v30, v20, v{GI}"); a(f"v_mul_f32 v31, v20, v{GI+1}"); a("v_mul_f32 v32, v20, v24")
    for k in range(1, 4):
        a(f"v_fmac_f32 v30, v{20+k}, v{GI+4*k}"); a(f"v_fmac_f32 v31, v{20+k}, v{GI+4*k+1}"); a(f"v_fmac_f32 v32, v{20+k}, v{24+k}")
    allred([30, 31, 32], [33, 34, 35], first=("row_ror:8",))
    a("v_rcp_f32 v28, v32")
    for r in (30, 31):
        a(f"v_mul_f32 v33, v{r}, v28")
        a(f"v_fma_f32 v34, -v33, v32, v{r}")
        a(f"v_fma_f32 v{r}, v34, v28, v33")
    a("v_cvt_pk_bf16_f32 v30, v30, v31")
    SO = 40
    a("s_waitcnt lgkmcnt(0)")
    for j in range(8): a(f"v_readlane_b32 s{SO+j}, v30, {j}")
    for j in range(8):
        for c in range(8):
            src2 = "0" if j == 0 else f"v{12+c}"
            a(f"v_dot2_f32_bf16 v{12+c}, v{WP+8*j+c}, s{SO+j}, {src2}")
    for k in range(4):
        g = 20 + 4 * k
        pack(g, 12 + 2 * k, 44 + 2 * k, 45 + 2 * k, 13 + 2 * k, 54)
        a(f"buffer_store_dwordx4 v[{g}:{g+3}], v53, s[64:67], s50 offen sc1")
        if k < 3: a("s_add_u32 s50, s50, 16384")
    if stamps:
        stamp(8)
        a("v_mov_b32 v22, 0"); a("s_mov_b64 exec, 1")
        a.fence()
        store_stamps([0, 1, 2, 3, 4, 5, 6, 7, 8])
        a("s_cmp_lt_u32 s2, 64"); a("s_cbranch_scc1 L_end")
        store_stamps([9, 10, 11], src=8)
    a("s_endpgm")
    label("L_roleC")
    a("s_cmp_lt_u32 s2, 64")
    branch("s_cbranch_scc0", "L_end")
    a("s_sub_u32 s7, s3, 4"); a("s_lshl_b32 s7, s7, 12"); a("s_add_u32 s50, s50, s7")
    XV = slot(22)
    a(f"v_bfe_u32 v{XV+1}, v1, 1, 2"); a(f"v_lshlrev_b32 v{XV+1}, 4, v{XV+1}"); a(f"v_and_b32 v{XV+2}, 1, v1"); a(f"v_lshl_add_u32 v{XV+1}, v{XV+2}, 1, v{XV+1}")
    a("s_lshr_b32 s7, s2, 2"); a("s_lshl_b32 s7, s7, 6"); a("s_and_b32 s51, s2, 3"); a("s_lshl_b32 s51, s51, 2"); a("s_add_u32 s51, s51, s7")
    a(f"buffer_load_ushort v{XV}, v{XV+1}, s[8:11], s51 offen")
    stamp(9)
    a("s_barrier")
    def p2_issue():
        for k in range(4):
            a(f"buffer_load_dwordx4 v[{GI+4*k}:{GI+4*k+3}], v3, s[64:67], s50 offen offset:{k*1024} sc1")
    a(f"s_mov_b32 s49, {spin}")
    label("L_p2")
    p2_issue()
    a("s_waitcnt vmcnt(0)")
    a(f"v_xor_b32 v38, s6, v{GI+3}"); a(f"v_xor_b32 v39, s6, v{GI+7}"); a("v_or_b32 v38, v38, v39")
    a(f"v_xor_b32 v39, s6, v{GI+11}"); a(f"v_xor_b32 v37, s6, v{GI+15}"); a("v_or3_b32 v38, v38, v39, v37")
    a("v_cmp_ne_u32 vcc, 0, v38")
    a("s_sub_u32 s49, s49, 1"); a("s_cbranch_scc1 L_p2d")
    a("s_and_b64 exec, exec, vcc")
    branch("s_cbranch_execz", "L_p2d")
    a("s_sleep 1")
    a("s_branch L_p2")
    label("L_p2d")
    a("s_mov_b64 exec, -1")
    stamp(10)
    a("v_mov_b32 v36, 0x04000c0c"); a("v_mov_b32 v37, 0x0706000c")
    for k in range(4):
        g = GI + 4 * k
        a(f"v_perm_b32 v{g+3}, v{g+2}, v{g+1}, v36")
        a(f"v_perm_b32 v{g+3}, v{g+3}, v{g}, v37")
    for e in range(4):
        a(f"v_add_f32 v{GI+e}, v{GI+e}, v{GI+4+e}"); a(f"v_add_f32 v{GI+8+e}, v{GI+8+e}, v{GI+12+e}")
    for e in range(4):
        a(f"v_add_f32 v{GI+e}, v{GI+e}, v{GI+8+e}")
    r = swapred([GI, GI + 3, GI + 1, GI + 2], "v_permlane32_swap_b32")
    r = swapred(r, "v_permlane16_swap_b32")
    allred(r, [], first=("row_ror:4", "row_ror:8"), rows=False, full=False)
    a("v_and_b32 v36, 3, v1"); a("v_lshlrev_b32 v36, 6, v36"); a("v_and_b32 v37, 0x30, v1"); a("v_add_u32 v36, v36, v37")
    a("s_sub_u32 s7, s3, 4"); a("s_lshl_b32 s7, s7, 2"); a("v_add_u32 v36, s7, v36")
    a(f"ds_write_b32 v36, v{r[0]} offset:{L_RED}")
    a("s_waitcnt lgkmcnt(0)")
    a("s_barrier")
    a("s_cmp_eq_u32 s3, 4")
    branch("s_cbranch_scc0", "L_end")
    a("v_and_b32 v36, 7, v1"); a("v_lshlrev_b32 v36, 5, v36")
    a(f"ds_read_b128 v[20:23], v36 offset:{L_RED}")
    a(f"ds_read_b128 v[24:27], v36 offset:{L_RED+16}")
    a(f"v_lshlrev_b32 v40, 16, v{XV}")
    a("s_waitcnt lgkmcnt(0)")
    a("v_add_f32 v20, v20, v21"); a("v_add_f32 v22, v22, v23"); a("v_add_f32 v24, v24, v25"); a("v_add_f32 v26, v26, v27")
    a("v_add_f32 v20, v20, v22"); a("v_add_f32 v24, v24, v26")
    bf16r(20, 20); bf16r(24, 24)
    a("v_mul_f32 v25, 0xbfb8aa3b, v24")
    a("v_exp_f32 v25, v25")
    a("v_add_f32 v25, 1.0, v25")
    a("v_rcp_f32 v26, v25")
    a("v_mul_f32 v28, v24, v26")
    a("v_fma_f32 v27, -v28, v25, v24")
    a("v_fma_f32 v27, v27, v26, v28")
    a("v_cmp_o_f32 vcc, v27, v27")
    a("v_cndmask_b32 v27, v28, v27, vcc")
    bf16r(27, 27)
    a("v_mul_f32 v20, v20, v27")
    bf16r(20, 20)
    a("v_add_f32 v20, v40, v20")
    a("v_cvt_pk_bf16_f32 v20, v20, v20")
    a("s_mov_b64 exec, 0xff")
    a(f"buffer_store_short v20, v{XV+1}, s[60:63], s51 offen")
    a("v_mov_b32 v21, s6"); a("v_mov_b32 v22, 0")
    a("s_cmp_eq_u32 s2, 0"); a(f"s_cselect_b32 s7, 0, {OOB}")
    a("s_mov_b64 exec, 1")
    a("buffer_store_dword v21, v22, s[64:67], s7 offen")
    if stamps:
        stamp(11)
        store_stamps([9, 10, 11])
    a.label("L_end")
    a("s_endpgm")
    R('.section .rodata,"a"'); R(".p2align 6"); R(f".amdhsa_kernel {NAME}")
    R("  .amdhsa_next_free_vgpr 256"); R("  .amdhsa_next_free_sgpr 102"); R("  .amdhsa_accum_offset 256")
    R("  .amdhsa_group_segment_fixed_size 0"); R("  .amdhsa_kernarg_size 96"); R("  .amdhsa_user_sgpr_count 2")
    R("  .amdhsa_user_sgpr_kernarg_segment_ptr 1"); R("  .amdhsa_system_sgpr_workgroup_id_x 1"); R(".end_amdhsa_kernel")
    open(path, "w").write(a.text())

if __name__ == "__main__":
    gen("k3.s")
    gen("k3_st.s", stamps=True)
    gen("k3_lin.s", stamps=True, hmap="lin")
```
